```python
import torch

def _softmax(x, axis=-1):
    return torch.softmax(x, dim=axis)
def _gelu(x):
    return torch.nn.functional.gelu(x, approximate="tanh")
def _silu(x):
    return torch.nn.functional.silu(x)
def _sigmoid(x):
    return torch.sigmoid(x)
def _layernorm(x, axis=-1, eps=1e-5):
    m = x.mean(dim=axis, keepdim=True)
    v = x.var(dim=axis, keepdim=True, unbiased=False)
    return (x - m) / torch.sqrt(v + eps)
def _scatter_add(tgt, idx, src, axis=0):
    return tgt.clone().index_add_(axis, idx, src)
def _segment_sum(src, seg, n):
    out = torch.zeros((n,) + src.shape[1:], dtype=src.dtype)
    return out.index_add_(0, seg, src)
def _pad(x, pw):
    flat = tuple(v for pair in reversed(pw) for v in pair)
    return torch.nn.functional.pad(x, flat)

kernel_name = 'concat_heads__mha_block_cached__gqa_block_cached__near_ridge'

def setup_inputs():

    _w = (lambda a: (lambda t: t.to(torch.bfloat16) if t.is_floating_point() else t)(torch.as_tensor(a)))
    def _A_setup():
        B, Sq, D = 8, 144, 448
        H, Sk, Dh = 16, 512, 256
        return {
            "x": _w((lambda *s: torch.randn(*s, dtype=torch.bfloat16) * 0.8)(B, Sq, D)),
            "k_cache": _w((lambda *s: torch.randn(*s, dtype=torch.bfloat16) * 0.8)(B, H, Sk, Dh)),
            "v_cache": _w((lambda *s: torch.randn(*s, dtype=torch.bfloat16) * 0.05)(B, H, Sk, Dh)),
            "wq": _w((lambda *s: torch.randn(*s, dtype=torch.bfloat16) * 0.8)(D, H * Dh) * (D ** -0.5)),
            "wo": _w((lambda *s: torch.randn(*s, dtype=torch.bfloat16) * 0.05)(H * Dh, D) * ((H * Dh) ** -0.5)),
        }
    _A_in = _A_setup()

    def _B_setup():
        B, Sq, D = 8, 144, 448
        Hq, Hkv, Sk, Dh = 16, 16, 512, 256
        assert Hq % Hkv == 0, (Hq, Hkv)
        return {
            "x": _w((lambda *s: torch.randn(*s, dtype=torch.bfloat16) * 0.8)(B, Sq, D)),
            "k_cache": _w((lambda *s: torch.randn(*s, dtype=torch.bfloat16) * 0.8)(B, Hkv, Sk, Dh)),
            "v_cache": _w((lambda *s: torch.randn(*s, dtype=torch.bfloat16) * 0.05)(B, Hkv, Sk, Dh)),
            "wq": _w((lambda *s: torch.randn(*s, dtype=torch.bfloat16) * 0.8)(D, Hq * Dh) * (D ** -0.5)),
            "wo": _w((lambda *s: torch.randn(*s, dtype=torch.bfloat16) * 0.05)(Hq * Dh, D) * ((Hq * Dh) ** -0.5)),
        }
    _B_in = _B_setup()

    return {
        "A_x": _A_in["x"],
        "A_k_cache": _A_in["k_cache"],
        "A_v_cache": _A_in["v_cache"],
        "A_wq": _A_in["wq"],
        "A_wo": _A_in["wo"],
        "B_x": _B_in["x"],
        "B_k_cache": _B_in["k_cache"],
        "B_v_cache": _B_in["v_cache"],
        "B_wq": _B_in["wq"],
        "B_wo": _B_in["wo"],
    }

def reference(A_x, A_k_cache, A_v_cache, A_wq, A_wo, B_x, B_k_cache, B_v_cache, B_wq, B_wo):
    def _A_ref(x, k_cache, v_cache, wq, wo):
        B, Sq, D = x.shape
        H, Dh = 16, 256
        q = (lambda x, *d: x.permute(*d))((x @ wq).reshape(B, Sq, H, Dh), 0, 2, 1, 3)
        scores = torch.einsum("bhqd,bhkd->bhqk", q, k_cache) * (Dh ** -0.5)
        p = _softmax(scores, axis=-1)
        o = torch.einsum("bhqk,bhkd->bhqd", p, v_cache)
        return (lambda x, *d: x.permute(*d))(o, 0, 2, 1, 3).reshape(B, Sq, H * Dh) @ wo

    def _B_ref(x, k_cache, v_cache, wq, wo):
        B, Sq, D = x.shape
        Hq, Dh = 16, 256
        Hkv = k_cache.shape[1]
        rep = Hq // Hkv
        q = (lambda x, *d: x.permute(*d))((x @ wq).reshape(B, Sq, Hq, Dh), 0, 2, 1, 3)
        k = (lambda x, n, axis: torch.repeat_interleave(x, n, dim=axis))(k_cache, rep, axis=1)
        v = (lambda x, n, axis: torch.repeat_interleave(x, n, dim=axis))(v_cache, rep, axis=1)
        scores = torch.einsum("bhqd,bhkd->bhqk", q, k) * (Dh ** -0.5)
        p = _softmax(scores, axis=-1)
        o = torch.einsum("bhqk,bhkd->bhqd", p, v)
        return (lambda x, *d: x.permute(*d))(o, 0, 2, 1, 3).reshape(B, Sq, Hq * Dh) @ wo

    a = _A_ref(A_x, A_k_cache, A_v_cache, A_wq, A_wo)
    b = _B_ref(B_x, B_k_cache, B_v_cache, B_wq, B_wo)
    return torch.concatenate([a, b], axis=-1)
```

```python
import sys

NAME = "concat_heads__mha_block_cached__gqa_block_cached__near_ridge"
OUT = f"cdna_kernels/{NAME}.s"

L = []
def e(s=""):
    L.append(s)

_lab = [0]
def newlabel(p="L"):
    _lab[0] += 1
    return f"{p}_{_lab[0]}"

FB = [16, 20, 24, 28, 152, 156, 160, 164]
QR = 32
ACC = 64
SR = 128
PR = 144
def xreg(ks):
    return 32 + 4 * ks if ks < 8 else 128 + 4 * (ks - 8)

NSLOT = 10
SLOT = 16384
def wslot(m):
    return (7 + m % 3) * SLOT
def kvslot(n):
    return (n % NSLOT) * SLOT

def kv_tile(n):
    c, r = divmod(n, 4)
    return ("K", 2 * c + r) if r < 2 else ("V", 2 * c + r - 2)

def dma_issue(role, srd, soff, slotbase):
    skip = newlabel("Lskip")
    e(f"  s_cmp_lg_u32 s31, {role}")
    e(f"  s_cbranch_scc1 {skip}")
    e(f"  s_mov_b32 s53, {soff}")
    for j in range(4):
        e(f"  s_add_u32 m0, s50, {slotbase + j * 1024}")
        e(f"  s_nop 0")
        e(f"  buffer_load_dwordx4 v{4 + j}, s[{srd}:{srd + 3}], s53 offen lds")
    e(f"{skip}:")

def pipeline(nfrag, reads, mfma, depth=6):
    for i in range(min(depth, nfrag)):
        reads(i, i % 8)
    for i in range(nfrag):
        outstanding_after = min(depth, nfrag - i) - 1
        e(f"  s_waitcnt lgkmcnt({2 * outstanding_after})")
        mfma(i, i % 8)
        if i + depth < nfrag:
            reads(i + depth, (i + depth) % 8)

def tr_phase(slotbase, breg, first):
    e(f"  v_add_u32 v8, {slotbase}, v3")
    tmpregs = [9, 10, 11]
    def reads(t, buf):
        a = tmpregs[t % 3]
        e(f"  v_xor_b32 v{a}, {(t & 7) << 5}, v8")
        off = 256 * (t >> 3)
        e(f"  ds_read_b64_tr_b16 v[{FB[buf]}:{FB[buf] + 1}], v{a} offset:{off}")
        e(f"  ds_read_b64_tr_b16 v[{FB[buf] + 2}:{FB[buf] + 3}], v{a} offset:{off + 8192}")
    def mfma(t, buf):
        d = ACC + 4 * t
        c = "0" if first else f"v[{d}:{d + 3}]"
        e(f"  v_mfma_f32_16x16x32_bf16 v[{d}:{d + 3}], v[{FB[buf]}:{FB[buf] + 3}], v[{breg}:{breg + 3}], {c}")
    pipeline(16, reads, mfma)

def k_phase(slotbase, sbase):
    e(f"  v_add_u32 v8, {slotbase}, v2")
    frs = [(s, tl) for s in range(8) for tl in range(2)]
    def reads(i, buf):
        s, tl = frs[i]
        off = 256 * (s >> 2) + 8192 * tl
        if tl == 0:
            e(f"  v_xor_b32 v9, {(s & 3) << 6}, v8")
            e(f"  v_xor_b32 v10, {((s & 3) << 6) | 32}, v8")
        e(f"  ds_read_b64 v[{FB[buf]}:{FB[buf] + 1}], v9 offset:{off}")
        e(f"  ds_read_b64 v[{FB[buf] + 2}:{FB[buf] + 3}], v10 offset:{off}")
    def mfma(i, buf):
        s, tl = frs[i]
        d = sbase + 4 * tl
        c = "0" if s == 0 else f"v[{d}:{d + 3}]"
        q = QR + 4 * s
        e(f"  v_mfma_f32_16x16x32_bf16 v[{d}:{d + 3}], v[{FB[buf]}:{FB[buf] + 3}], v[{q}:{q + 3}], {c}")
    pipeline(16, reads, mfma)

def softmax(chunk):
    e("  s_nop 7")
    e("  s_nop 1")
    S = [SR + i for i in range(16)]
    e(f"  v_max3_f32 v16, v{S[0]}, v{S[1]}, v{S[2]}")
    e(f"  v_max3_f32 v17, v{S[3]}, v{S[4]}, v{S[5]}")
    e(f"  v_max3_f32 v18, v{S[6]}, v{S[7]}, v{S[8]}")
    e(f"  v_max3_f32 v19, v{S[9]}, v{S[10]}, v{S[11]}")
    e(f"  v_max3_f32 v20, v{S[12]}, v{S[13]}, v{S[14]}")
    e(f"  v_max3_f32 v16, v16, v17, v{S[15]}")
    e(f"  v_max3_f32 v18, v18, v19, v20")
    e(f"  v_max_f32 v16, v16, v18")
    e(f"  v_mov_b32 v17, v16")
    e("  s_nop 1")
    e("  v_permlane32_swap_b32 v16, v17")
    e("  s_nop 1")
    e("  v_max_f32 v16, v16, v17")
    e(f"  v_mov_b32 v17, v16")
    e("  s_nop 1")
    e("  v_permlane16_swap_b32 v16, v17")
    e("  s_nop 1")
    e("  v_max_f32 v16, v16, v17")
    if chunk > 0:
        e("  v_max_f32 v16, v16, v12")
    e("  v_mul_f32 v14, s52, v16")
    if chunk > 0:
        e("  v_fma_f32 v15, v12, s51, v14")
        e("  v_exp_f32 v15, v15")
    e("  v_mov_b32 v12, v16")
    for i in range(16):
        e(f"  v_fma_f32 v{S[i]}, v{S[i]}, s51, v14")
    for i in range(16):
        e(f"  v_exp_f32 v{S[i]}, v{S[i]}")
    e("  s_nop 0")
    e(f"  v_add_f32 v16, v{S[0]}, v{S[1]}")
    e(f"  v_add_f32 v17, v{S[2]}, v{S[3]}")
    e(f"  v_add_f32 v18, v{S[4]}, v{S[5]}")
    e(f"  v_add_f32 v19, v{S[6]}, v{S[7]}")
    for i in range(8, 16, 4):
        e(f"  v_add_f32 v16, v16, v{S[i]}")
        e(f"  v_add_f32 v17, v17, v{S[i + 1]}")
        e(f"  v_add_f32 v18, v18, v{S[i + 2]}")
        e(f"  v_add_f32 v19, v19, v{S[i + 3]}")
    e("  v_add_f32 v16, v16, v17")
    e("  v_add_f32 v18, v18, v19")
    e("  v_add_f32 v16, v16, v18")
    if chunk > 0:
        e("  v_fma_f32 v13, v13, v15, v16")
    else:
        e("  v_mov_b32 v13, v16")
    for j in range(2):
        for q in range(4):
            e(f"  v_cvt_pk_bf16_f32 v{PR + 4 * j + q}, v{S[8 * j + 2 * q]}, v{S[8 * j + 2 * q + 1]}")
    if chunk > 0:
        for i in range(64):
            e(f"  v_mul_f32 v{ACC + i}, v15, v{ACC + i}")
    e("  s_nop 1")

def kernel1():
    e(f"attn_kernel:")
    e("  s_cmp_ge_u32 s2, 256")
    e("  s_cbranch_scc1 L_k1_end")
    e("  s_load_dwordx8 s[32:39], s[0:1], 0")
    e("  s_load_dwordx8 s[40:47], s[0:1], 40")
    e("  s_load_dwordx2 s[48:49], s[0:1], 96")
    e("  s_lshr_b32 s28, s2, 7")
    e("  s_lshr_b32 s29, s2, 4")
    e("  s_and_b32 s29, s29, 7")
    e("  s_and_b32 s30, s2, 15")
    e("  v_lshrrev_b32 v1, 6, v0")
    e("  s_nop 0")
    e("  v_readfirstlane_b32 s3, v1")
    e("  v_and_b32 v1, 63, v0")
    e("  s_waitcnt lgkmcnt(0)")
    e("  s_cmp_eq_u32 s28, 0")
    for i in range(8):
        e(f"  s_cselect_b32 s{32 + i}, s{32 + i}, s{40 + i}")
    e("  s_mul_i32 s4, s29, 129024")
    e("  s_add_u32 s8, s32, s4")
    e("  s_addc_u32 s9, s33, 0")
    e("  s_and_b32 s9, s9, 0xffff")
    e("  s_mov_b32 s10, 129024")
    e("  s_mov_b32 s11, 0x00020000")
    e("  s_lshl_b32 s4, s30, 9")
    e("  s_add_u32 s12, s38, s4")
    e("  s_addc_u32 s13, s39, 0")
    e("  s_and_b32 s13, s13, 0xffff")
    e(f"  s_sub_u32 s14, {448 * 8192}, s4")
    e("  s_mov_b32 s15, 0x00020000")
    e("  s_lshl_b32 s4, s29, 4")
    e("  s_add_u32 s4, s4, s30")
    e("  s_lshr_b32 s5, s4, 14")
    e("  s_lshl_b32 s4, s4, 18")
    e("  s_add_u32 s16, s34, s4")
    e("  s_addc_u32 s17, s35, s5")
    e("  s_and_b32 s17, s17, 0xffff")
    e("  s_mov_b32 s18, 262144")
    e("  s_mov_b32 s19, 0x00020000")
    e("  s_add_u32 s20, s36, s4")
    e("  s_addc_u32 s21, s37, s5")
    e("  s_and_b32 s21, s21, 0xffff")
    e("  s_mov_b32 s22, 262144")
    e("  s_mov_b32 s23, 0x00020000")
    e("  s_mov_b32 s24, s48")
    e("  s_and_b32 s25, s49, 0xffff")
    e(f"  s_mov_b32 s26, {2 * 1152 * 8192}")
    e("  s_mov_b32 s27, 0x00020000")
    e("  s_lshr_b32 s31, s3, 2")
    e("  s_and_b32 s4, s3, 3")
    e("  s_lshl_b32 s50, s4, 12")
    e("  s_mov_b32 s51, 0x3db8aa3b")
    e("  s_mov_b32 s52, 0xbdb8aa3b")
    e("  v_and_b32 v9, 15, v1")
    e("  v_lshrrev_b32 v10, 4, v1")
    e("  s_lshl_b32 s5, s3, 4")
    e("  v_add_u32 v11, s5, v9")
    e("  v_mul_u32_u24 v11, 896, v11")
    e("  v_lshl_add_u32 v11, v10, 3, v11")
    for ks in range(14):
        r = xreg(ks)
        e(f"  buffer_load_dwordx2 v[{r}:{r + 1}], v11, s[8:11], 0 offen offset:{64 * ks}")
        e(f"  buffer_load_dwordx2 v[{r + 2}:{r + 3}], v11, s[8:11], 0 offen offset:{64 * ks + 32}")
    e("  v_and_b32 v12, 7, v9")
    e("  v_lshlrev_b32 v12, 1, v12")
    e("  v_lshrrev_b32 v13, 3, v9")
    e("  v_or_b32 v12, v12, v13")
    e("  v_lshrrev_b32 v13, 1, v10")
    e("  v_xor_b32 v12, v12, v13")
    e("  v_lshlrev_b32 v12, 4, v12")
    e("  v_lshl_add_u32 v2, v9, 9, v12")
    e("  v_and_b32 v13, 1, v10")
    e("  v_lshl_add_u32 v2, v13, 3, v2")
    e("  v_lshrrev_b32 v12, 2, v1")
    e("  v_and_b32 v13, 7, v12")
    e("  v_lshlrev_b32 v13, 1, v13")
    e("  v_lshrrev_b32 v14, 3, v12")
    e("  v_or_b32 v13, v13, v14")
    e("  v_bfe_u32 v14, v1, 1, 1")
    e("  v_xor_b32 v13, v13, v14")
    e("  v_lshlrev_b32 v13, 4, v13")
    e("  v_lshl_add_u32 v3, v12, 9, v13")
    e("  v_and_b32 v14, 1, v1")
    e("  v_lshl_add_u32 v3, v14, 3, v3")
    e("  s_cmp_eq_u32 s31, 0")
    e("  s_cselect_b32 s5, 13, 9")
    e("  s_and_b32 s6, s4, 1")
    e("  s_lshl_b32 s7, s4, 3")
    e("  v_lshrrev_b32 v12, 5, v1")
    e("  v_and_b32 v13, 31, v1")
    for j in range(4):
        e(f"  v_add_u32 v14, {2 * j}, v12")
        e(f"  v_lshlrev_b32 v15, 1, v14")
        e(f"  v_or_b32 v15, s6, v15")
        e(f"  v_xor_b32 v15, v15, v13")
        e(f"  v_lshlrev_b32 v15, 4, v15")
        e(f"  v_add_u32 v14, s7, v14")
        e(f"  v_lshlrev_b32 v14, s5, v14")
        e(f"  v_add_u32 v{4 + j}, v14, v15")
    for n in range(7):
        kind, t = kv_tile(n)
        dma_issue(1, 16 if kind == "K" else 20, t * 16384, kvslot(n))
    for m in range(3):
        dma_issue(0, 12, m * 262144, wslot(m))
    for m in range(14):
        lk = newlabel("Lkvw"); lj = newlabel("Ljoin")
        after = min(m + 2, 13) - m if m == 0 else min(m + 1, 13) - m
        e("  s_cmp_eq_u32 s31, 1")
        e(f"  s_cbranch_scc1 {lk}")
        if m == 0:
            e("  s_cmp_eq_u32 s31, 0")
            e(f"  s_cbranch_scc1 {lk}_w")
            e("  s_waitcnt vmcnt(0)")
            e(f"{lk}_w:")
        e(f"  s_waitcnt vmcnt({4 * after})")
        e(f"  s_branch {lj}")
        e(f"{lk}:")
        if m == 0:
            e("  s_waitcnt vmcnt(28)")
        e(f"{lj}:")
        e("  s_barrier")
        if 1 <= m and m + 2 <= 13:
            dma_issue(0, 12, (m + 2) * 262144, wslot(m + 2))
        tr_phase(wslot(m), xreg(m), m == 0)
    e("  s_nop 7")
    e("  s_nop 1")
    for s in range(8):
        a = ACC + 8 * s
        for q in range(4):
            e(f"  v_cvt_pk_bf16_f32 v{QR + 4 * s + q}, v{a + 2 * q}, v{a + 2 * q + 1}")
    for n in range(32):
        kind, t = kv_tile(n)
        issued = 6 if n == 0 else min(n + 8, 31)
        e(f"  s_waitcnt vmcnt({4 * (issued - n)})")
        e("  s_barrier")
        if n == 0:
            for nn in (7, 8, 9):
                k2, t2 = kv_tile(nn)
                dma_issue(1, 16 if k2 == "K" else 20, t2 * 16384, kvslot(nn))
        elif n + 9 <= 31:
            k2, t2 = kv_tile(n + 9)
            dma_issue(1, 16 if k2 == "K" else 20, t2 * 16384, kvslot(n + 9))
        if kind == "K":
            k_phase(kvslot(n), SR + 8 * (t & 1))
            if t & 1:
                softmax(t >> 1)
        else:
            tr_phase(kvslot(n), PR + 4 * (t & 1), t == 0)
    e("  s_nop 7")
    e("  s_nop 1")
    e("  v_mov_b32 v17, v13")
    e("  s_nop 1")
    e("  v_permlane32_swap_b32 v13, v17")
    e("  s_nop 1")
    e("  v_add_f32 v13, v13, v17")
    e("  v_mov_b32 v17, v13")
    e("  s_nop 1")
    e("  v_permlane16_swap_b32 v13, v17")
    e("  s_nop 1")
    e("  v_add_f32 v13, v13, v17")
    e("  v_rcp_f32 v13, v13")
    e("  s_mul_i32 s4, s28, 1152")
    e("  s_mul_i32 s5, s29, 144")
    e("  s_add_u32 s4, s4, s5")
    e("  s_lshl_b32 s5, s3, 4")
    e("  s_add_u32 s4, s4, s5")
    e("  v_and_b32 v9, 15, v1")
    e("  v_add_u32 v9, s4, v9")
    e("  v_lshlrev_b32 v9, 13, v9")
    e("  v_lshrrev_b32 v10, 4, v1")
    e("  v_lshl_add_u32 v9, v10, 3, v9")
    e("  s_lshl_b32 s5, s30, 9")
    e("  v_add_u32 v9, s5, v9")
    for t in range(16):
        a = ACC + 4 * t
        for r in range(4):
            e(f"  v_mul_f32 v{a + r}, v13, v{a + r}")
        d = FB[t % 8]
        e(f"  v_cvt_pk_bf16_f32 v{d}, v{a}, v{a + 1}")
        e(f"  v_cvt_pk_bf16_f32 v{d + 1}, v{a + 2}, v{a + 3}")
        e(f"  buffer_store_dwordx2 v[{d}:{d + 1}], v9, s[24:27], 0 offen offset:{32 * t}")
    e("L_k1_end:")
    e("  s_endpgm")

def kernel2():
    DEPTH = 4
    ACC2 = 64
    BF = 128
    AF = 16
    e(".p2align 8")
    e("oproj_kernel:")
    e("  s_cmp_ge_u32 s2, 252")
    e("  s_cbranch_scc1 L_k2_end")
    e("  s_load_dwordx2 s[32:33], s[0:1], 32")
    e("  s_load_dwordx2 s[34:35], s[0:1], 72")
    e("  s_load_dwordx2 s[36:37], s[0:1], 80")
    e("  s_load_dwordx2 s[38:39], s[0:1], 96")
    e("  s_cmp_ge_u32 s2, 126")
    e("  s_cselect_b32 s28, 1, 0")
    e("  s_mul_i32 s4, s28, 126")
    e("  s_sub_u32 s4, s2, s4")
    e("  s_mul_i32 s29, s4, 9363")
    e("  s_lshr_b32 s29, s29, 16")
    e("  s_mul_i32 s5, s29, 7")
    e("  s_sub_u32 s30, s4, s5")
    e("  v_lshrrev_b32 v1, 6, v0")
    e("  s_nop 0")
    e("  v_readfirstlane_b32 s3, v1")
    e("  v_and_b32 v1, 63, v0")
    e("  s_waitcnt lgkmcnt(0)")
    e("  s_cmp_eq_u32 s28, 0")
    e("  s_cselect_b32 s32, s32, s34")
    e("  s_cselect_b32 s33, s33, s35")
    e("  s_mov_b32 s8, s32")
    e("  s_and_b32 s9, s33, 0xffff")
    e(f"  s_mov_b32 s10, {4096 * 896}")
    e("  s_mov_b32 s11, 0x00020000")
    e("  s_mov_b32 s12, s38")
    e("  s_and_b32 s13, s39, 0xffff")
    e(f"  s_mov_b32 s14, {2 * 1152 * 8192}")
    e("  s_mov_b32 s15, 0x00020000")
    e("  s_mov_b32 s16, s36")
    e("  s_and_b32 s17, s37, 0xffff")
    e(f"  s_mov_b32 s18, {1152 * 1792}")
    e("  s_mov_b32 s19, 0x00020000")
    e("  s_lshl_b32 s50, s3, 14")
    e("  v_and_b32 v9, 15, v1")
    e("  v_lshrrev_b32 v10, 4, v1")
    e("  s_mul_i32 s4, s28, 1152")
    e("  s_lshl_b32 s5, s29, 6")
    e("  s_add_u32 s4, s4, s5")
    e("  v_add_u32 v2, s4, v9")
    e("  v_lshlrev_b32 v2, 13, v2")
    e("  v_lshl_add_u32 v2, v10, 4, v2")
    e("  s_lshl_b32 s5, s3, 10")
    e("  v_add_u32 v2, s5, v2")
    e("  v_lshrrev_b32 v11, 3, v1")
    e("  v_bfe_u32 v12, v11, 1, 1")
    e("  v_lshlrev_b32 v12, 1, v12")
    e("  v_and_b32 v13, 7, v1")
    e("  v_xor_b32 v12, v12, v13")
    e("  v_lshlrev_b32 v12, 4, v12")
    e("  s_lshl_b32 s5, s3, 9")
    e("  v_add_u32 v11, s5, v11")
    e("  v_mul_u32_u24 v11, 896, v11")
    e("  v_add_u32 v3, v11, v12")
    e("  s_lshl_b32 s5, s30, 7")
    e("  v_add_u32 v3, s5, v3")
    e("  v_xor_b32 v14, 64, v3")
    e("  v_bfe_u32 v11, v1, 2, 2")
    e("  v_lshl_add_u32 v11, v10, 3, v11")
    e("  v_bfe_u32 v12, v1, 3, 1")
    e("  v_bfe_u32 v13, v1, 4, 1")
    e("  v_lshl_add_u32 v12, v13, 1, v12")
    e("  v_lshlrev_b32 v12, 1, v12")
    e("  v_bfe_u32 v13, v1, 1, 1")
    e("  v_or_b32 v12, v12, v13")
    e("  v_lshlrev_b32 v12, 4, v12")
    e("  v_lshl_add_u32 v4, v11, 7, v12")
    e("  v_and_b32 v13, 1, v1")
    e("  v_lshl_add_u32 v4, v13, 3, v4")
    e("  v_add_u32 v4, s50, v4")

    def loads(ks):
        sl = ks % DEPTH
        for j in range(4):
            e(f"  s_add_u32 m0, s50, {sl * 4096 + j * 1024}")
            e(f"  s_mov_b32 s53, {(32 * ks + 8 * j) * 896}")
            e(f"  buffer_load_dwordx4 v{3 if j % 2 == 0 else 14}, s[8:11], s53 offen lds")
        for mi in range(4):
            r = BF + 16 * sl + 4 * mi
            e(f"  s_mov_b32 s53, {mi * 131072}")
            e(f"  buffer_load_dwordx4 v[{r}:{r + 3}], v2, s[12:15], s53 offen offset:{64 * ks}")
    for ks in range(DEPTH):
        loads(ks)
    for ks in range(16):
        sl = ks % DEPTH
        after = min(ks + DEPTH - 1, 15) - ks
        e(f"  s_waitcnt vmcnt({8 * after})")
        for ni in range(4):
            e(f"  v_xor_b32 v{5 + ni}, {ni << 5}, v4")
            e(f"  ds_read_b64_tr_b16 v[{AF + 4 * ni}:{AF + 4 * ni + 1}], v{5 + ni} offset:{sl * 4096}")
            e(f"  ds_read_b64_tr_b16 v[{AF + 4 * ni + 2}:{AF + 4 * ni + 3}], v{5 + ni} offset:{sl * 4096 + 512}")
        for ni in range(4):
            e(f"  s_waitcnt lgkmcnt({2 * (3 - ni)})")
            for mi in range(4):
                d = ACC2 + 4 * (4 * ni + mi)
                c = "0" if ks == 0 else f"v[{d}:{d + 3}]"
                b = BF + 16 * sl + 4 * mi
                e(f"  v_mfma_f32_16x16x32_bf16 v[{d}:{d + 3}], v[{AF + 4 * ni}:{AF + 4 * ni + 3}], v[{b}:{b + 3}], {c}")
        if ks + DEPTH < 16:
            loads(ks + DEPTH)
    e("  s_nop 7")
    e("  s_nop 1")
    e("  v_lshlrev_b32 v5, 4, v1")
    e("  v_add_u32 v5, s50, v5")
    for t in range(16):
        d = ACC2 + 4 * t
        e(f"  ds_write_b128 v5, v[{d}:{d + 3}] offset:{1024 * t}")
    e("  s_waitcnt lgkmcnt(0)")
    e("  s_barrier")
    e("  v_lshlrev_b32 v5, 4, v1")
    e("  s_lshl_b32 s4, s3, 11")
    e("  v_add_u32 v5, s4, v5")
    for tt in range(2):
        for p in range(8):
            r = 16 + 4 * p + 32 * tt
            e(f"  ds_read_b128 v[{r}:{r + 3}], v5 offset:{16384 * p + 1024 * tt}" if 16384 * p + 1024 * tt < 65536 else "")
    e("  v_add_u32 v6, 0x10000, v5")
    for tt in range(2):
        for p in range(4, 8):
            r = 16 + 4 * p + 32 * tt
            e(f"  ds_read_b128 v[{r}:{r + 3}], v6 offset:{16384 * (p - 4) + 1024 * tt}")
    e("  s_waitcnt lgkmcnt(0)")
    for tt in range(2):
        b0 = 16 + 32 * tt
        for p in range(1, 8):
            for r in range(4):
                e(f"  v_add_f32 v{b0 + r}, v{b0 + r}, v{b0 + 4 * p + r}")
    e("  s_and_b32 s4, s3, 1")
    e("  s_lshl_b32 s4, s4, 5")
    e("  s_lshl_b32 s5, s29, 6")
    e("  s_add_u32 s4, s4, s5")
    e("  v_add_u32 v9, s4, v9")
    e("  v_mul_u32_u24 v9, 1792, v9")
    e("  v_lshl_add_u32 v9, v10, 3, v9")
    e("  s_mul_i32 s4, s28, 896")
    e("  s_lshl_b32 s5, s30, 7")
    e("  s_add_u32 s4, s4, s5")
    e("  s_lshr_b32 s5, s3, 1")
    e("  s_lshl_b32 s5, s5, 5")
    e("  s_add_u32 s4, s4, s5")
    e("  v_add_u32 v9, s4, v9")
    for tt in range(2):
        b0 = 16 + 32 * tt
        e(f"  v_cvt_pk_bf16_f32 v{b0}, v{b0}, v{b0 + 1}")
        e(f"  v_cvt_pk_bf16_f32 v{b0 + 1}, v{b0 + 2}, v{b0 + 3}")
        e(f"  s_mov_b32 s53, {tt * 16 * 1792}")
        e(f"  buffer_store_dwordx2 v[{b0}:{b0 + 1}], v9, s[16:19], s53 offen")
    e("L_k2_end:")
    e("  s_endpgm")

def main():
    hdr = open(f"cdna_kernels/{NAME}.s.ref").read().splitlines()
    for line in hdr:
        if line.startswith("; @launch"):
            break
        if "@launch" in line:
            continue
        e(line)
    e("; @launch kernel=attn_kernel grid=(256,1,1) block=(576,1,1) lds=163840")
    e("; @launch kernel=oproj_kernel grid=(252,1,1) block=(512,1,1) lds=131072")
    e('.amdgcn_target "amdgcn-amd-amdhsa--gfx950"')
    e(".text")
    e(".globl attn_kernel")
    e(".p2align 8")
    e(".type attn_kernel,@function")
    kernel1()
    e(".globl oproj_kernel")
    e(".type oproj_kernel,@function")
    kernel2()
    e('.section .rodata,"a"')
    for name, nv in (("attn_kernel", 168), ("oproj_kernel", 192)):
        e(".p2align 6")
        e(f".amdhsa_kernel {name}")
        e(f"  .amdhsa_next_free_vgpr {nv}")
        e("  .amdhsa_next_free_sgpr 64")
        e(f"  .amdhsa_accum_offset {nv}")
        e("  .amdhsa_group_segment_fixed_size 0")
        e("  .amdhsa_kernarg_size 104")
        e("  .amdhsa_user_sgpr_count 2")
        e("  .amdhsa_user_sgpr_kernarg_segment_ptr 1")
        e("  .amdhsa_system_sgpr_workgroup_id_x 1")
        e(".end_amdhsa_kernel")
    open(OUT, "w").write("\n".join(x for x in L if x is not None) + "\n")

main()
```

```python
import sys, os
MODE = os.environ.get("MODE", "")

NAME = "concat_heads__mha_block_cached__gqa_block_cached__near_ridge"
OUT = os.environ.get("OUT", f"cdna_kernels/{NAME}.s")

L = []
def e(s=""):
    L.append(s)

_lab = [0]
def newlabel(p="L"):
    _lab[0] += 1
    return f"{p}_{_lab[0]}"

NSLOT = 6
SLOT = 16384
PD = 4
LOOK = 5
FBA = 192
QR = 32
SR = 128
PR = 224
VM = 10
VL = 13
VX = 16
VT = 19
def xreg(rt, ks):
    return 32 + 56 * rt + 4 * ks

TILES = [("W", m) for m in range(14)]
TILES += [("K", 0), ("K", 1)]
for c in range(8):
    if c < 7:
        TILES += [("K", 2 * c + 2), ("K", 2 * c + 3)]
    TILES += [("V", 2 * c), ("V", 2 * c + 1)]
NT = len(TILES)
assert NT == 46

def softmax_fillers(c, rare_blocks):
    F = []
    sb = SR + 48 * (c & 1)
    for rt in range(3):
        S = [sb + 16 * rt + i for i in range(16)]
        t = VT + 3 * rt
        x = VX + rt
        F += [f"v_max3_f32 v{t}, v{S[0]}, v{S[1]}, v{S[2]}",
              f"v_max3_f32 v{t+1}, v{S[3]}, v{S[4]}, v{S[5]}",
              f"v_max3_f32 v{t+2}, v{S[6]}, v{S[7]}, v{S[8]}",
              f"v_max3_f32 v{t}, v{t}, v{S[9]}, v{S[10]}",
              f"v_max3_f32 v{t+1}, v{t+1}, v{S[11]}, v{S[12]}",
              f"v_max3_f32 v{t+2}, v{t+2}, v{S[13]}, v{S[14]}",
              f"v_max3_f32 v{t}, v{t}, v{t+1}, v{S[15]}",
              f"v_max_f32 v{x}, v{t}, v{t+2}",
              f"v_mov_b32 v{t}, v{x}",
              "s_nop 1",
              f"v_permlane32_swap_b32 v{x}, v{t}",
              f"v_max_f32 v{x}, v{x}, v{t}",
              f"v_mov_b32 v{t}, v{x}",
              "s_nop 1",
              f"v_permlane16_swap_b32 v{x}, v{t}",
              f"v_max_f32 v{x}, v{x}, v{t}",
              f"v_mul_f32 v{x}, s51, v{x}"]
    if c == 0:
        for rt in range(3):
            F += [f"v_mov_b32 v{VM+rt}, v{VX+rt}"]
    else:
        lr = f"Lrare_{c}"
        F += [f"v_sub_f32 v{VT}, v{VX}, v{VM}",
              f"v_sub_f32 v{VT+1}, v{VX+1}, v{VM+1}",
              f"v_sub_f32 v{VT+2}, v{VX+2}, v{VM+2}",
              f"v_max3_f32 v{VT}, v{VT}, v{VT+1}, v{VT+2}",
              f"v_cmp_lt_f32 vcc, s52, v{VT}",
              f"s_cbranch_vccnz {lr}\n{lr}_ret:"]
        rare_blocks.append(lr)
    for rt in range(3):
        S = [sb + 16 * rt + i for i in range(16)]
        for i in range(16):
            F.append(f"v_fma_f32 v{S[i]}, v{S[i]}, s51, -v{VM+rt}")
        for i in range(16):
            F.append(f"v_exp_f32 v{S[i]}, v{S[i]}")
    for rt in range(3):
        S = [sb + 16 * rt + i for i in range(16)]
        t = VT + 3 * rt
        F += [f"v_add_f32 v{t}, v{S[0]}, v{S[1]}",
              f"v_add_f32 v{t+1}, v{S[2]}, v{S[3]}"]
        for i in range(4, 16, 2):
            F += [f"v_add_f32 v{t}, v{t}, v{S[i]}",
                  f"v_add_f32 v{t+1}, v{t+1}, v{S[i+1]}"]
        F += [f"v_add_f32 v{t}, v{t}, v{t+1}"]
        if c == 0:
            F += [f"v_mov_b32 v{VL+rt}, v{t}"]
        else:
            F += [f"v_add_f32 v{VL+rt}, v{VL+rt}, v{t}"]
    for rt in range(3):
        S = [sb + 16 * rt + i for i in range(16)]
        for j in range(2):
            for q in range(4):
                F.append(f"v_cvt_pk_bf16_f32 v{PR + 8*rt + 4*j + q}, v{S[8*j + 2*q]}, v{S[8*j + 2*q + 1]}")
    return F

def rare_block(lr):
    e(f"{lr}:")
    for rt in range(3):
        t = VT + 3 * rt
        e(f"  v_max_f32 v{t}, v{VM+rt}, v{VX+rt}")
        e(f"  v_sub_f32 v{t+1}, v{VM+rt}, v{t}")
        e(f"  v_exp_f32 v{t+1}, v{t+1}")
        e(f"  v_mov_b32 v{VM+rt}, v{t}")
        e(f"  v_mul_f32 v{VL+rt}, v{VL+rt}, v{t+1}")
        for i in range(64):
            a = 64 * rt + i
            e(f"  v_accvgpr_read_b32 v{t+2}, a{a}")
            e(f"  v_mul_f32 v{t+2}, v{t+2}, v{t+1}")
            e(f"  v_accvgpr_write_b32 a{a}, v{t+2}")
    e("  s_nop 1")
    e(f"  s_branch {lr}_ret")

def kernel1():
    e(f"attn_kernel:")
    e("  s_cmp_ge_u32 s2, 256")
    e("  s_cbranch_scc1 L_k1_end")
    e("  s_load_dwordx8 s[32:39], s[0:1], 0")
    e("  s_load_dwordx8 s[40:47], s[0:1], 40")
    e("  s_load_dwordx2 s[48:49], s[0:1], 96")
    e("  s_lshr_b32 s28, s2, 7")
    e("  s_lshr_b32 s29, s2, 4")
    e("  s_and_b32 s29, s29, 7")
    e("  s_and_b32 s30, s2, 15")
    e("  v_lshrrev_b32 v1, 6, v0")
    e("  s_nop 0")
    e("  v_readfirstlane_b32 s3, v1")
    e("  v_and_b32 v1, 63, v0")
    e("  s_waitcnt lgkmcnt(0)")
    e("  s_cmp_eq_u32 s28, 0")
    for i in range(8):
        e(f"  s_cselect_b32 s{32 + i}, s{32 + i}, s{40 + i}")
    e("  s_mul_i32 s4, s29, 129024")
    e("  s_add_u32 s8, s32, s4")
    e("  s_addc_u32 s9, s33, 0")
    e("  s_and_b32 s9, s9, 0xffff")
    e("  s_mov_b32 s10, 129024")
    e("  s_mov_b32 s11, 0x00020000")
    e("  s_lshl_b32 s4, s30, 9")
    e("  s_add_u32 s12, s38, s4")
    e("  s_addc_u32 s13, s39, 0")
    e("  s_and_b32 s13, s13, 0xffff")
    e(f"  s_sub_u32 s14, {448 * 8192}, s4")
    e("  s_mov_b32 s15, 0x00020000")
    e("  s_lshl_b32 s4, s29, 4")
    e("  s_add_u32 s4, s4, s30")
    e("  s_lshr_b32 s5, s4, 14")
    e("  s_lshl_b32 s4, s4, 18")
    e("  s_add_u32 s16, s34, s4")
    e("  s_addc_u32 s17, s35, s5")
    e("  s_and_b32 s17, s17, 0xffff")
    e("  s_mov_b32 s18, 262144")
    e("  s_mov_b32 s19, 0x00020000")
    e("  s_add_u32 s20, s36, s4")
    e("  s_addc_u32 s21, s37, s5")
    e("  s_and_b32 s21, s21, 0xffff")
    e("  s_mov_b32 s22, 262144")
    e("  s_mov_b32 s23, 0x00020000")
    e("  s_mov_b32 s24, s48")
    e("  s_and_b32 s25, s49, 0xffff")
    e(f"  s_mov_b32 s26, {2 * 1152 * 8192}")
    e("  s_mov_b32 s27, 0x00020000")
    e("  s_mov_b32 s51, 0x3db8aa3b")
    e("  s_mov_b32 s52, 0x41000000")
    e("  s_cmp_eq_u32 s3, 3")
    e("  s_cbranch_scc1 L_loader")
    e("  v_and_b32 v6, 15, v1")
    e("  v_lshrrev_b32 v7, 4, v1")
    e("  s_mul_i32 s5, s3, 48")
    e("  v_add_u32 v8, s5, v6")
    e("  v_mul_u32_u24 v8, 896, v8")
    e("  v_lshl_add_u32 v8, v7, 3, v8")
    for rt in range(3):
        e(f"  s_mov_b32 s53, {rt * 16 * 896}")
        for ks in range(14):
            r = xreg(rt, ks)
            e(f"  buffer_load_dwordx2 v[{r}:{r + 1}], v8, s[8:11], s53 offen offset:{64 * ks}")
            e(f"  buffer_load_dwordx2 v[{r + 2}:{r + 3}], v8, s[8:11], s53 offen offset:{64 * ks + 32}")
    e("  v_and_b32 v9, 7, v6")
    e("  v_lshlrev_b32 v9, 1, v9")
    e("  v_xor_b32 v9, v9, v7")
    e("  v_lshlrev_b32 v9, 4, v9")
    e("  v_lshl_add_u32 v2, v6, 9, v9")
    e("  v_lshrrev_b32 v8, 2, v1")
    e("  v_and_b32 v9, 7, v8")
    e("  v_lshlrev_b32 v9, 1, v9")
    e("  v_bfe_u32 v6, v1, 1, 1")
    e("  v_xor_b32 v6, v6, v9")
    e("  v_lshlrev_b32 v6, 4, v6")
    e("  v_lshl_add_u32 v3, v8, 9, v6")
    e("  v_and_b32 v6, 1, v1")
    e("  v_lshl_add_u32 v3, v6, 3, v3")
    e("  v_and_b32 v6, 3, v1")
    e("  v_xor_b32 v6, v6, v9")
    e("  v_lshlrev_b32 v6, 4, v6")
    e("  v_lshl_add_u32 v4, v8, 9, v6")

    frags = []
    atmp = [6, 7, 8, 9]
    ac = [0]
    def nexta():
        ac[0] += 1
        return atmp[ac[0] % 4]
    for n, (kind, t) in enumerate(TILES):
        sbase = (n % NSLOT) * SLOT
        for f in range(16):
            fr = dict(pre=[], reads=[], mf=[], post=[], phase=n)
            if f == 0:
                fr["pre"].append("s_barrier")
                a0 = {"W": 4, "K": 2, "V": 3}[kind]
                fr["pre"].append(f"v_add_u32 v5, {sbase}, v{a0}")
            if kind == "W":
                s, hb = f >> 1, f & 1
                if hb == 0:
                    a = nexta(); cur = a
                    fr["pre"].append(f"v_xor_b32 v{a}, {(s & 3) << 6}, v5")
                a = cur
                off = 256 * (s >> 2) + 8 * hb
                fr["reads"] = [f"ds_read_b64_tr_b16 a[{{fb}}:{{fb1}}], v{a} offset:{off}",
                               f"ds_read_b64_tr_b16 a[{{fb2}}:{{fb3}}], v{a} offset:{off + 8192}"]
                for rt in range(3):
                    d = 64 * rt + 4 * f
                    c = "0" if t == 0 else f"a[{d}:{d + 3}]"
                    b = xreg(rt, t)
                    fr["mf"].append(f"v_mfma_f32_16x16x32_bf16 a[{d}:{d + 3}], a[{{fb}}:{{fb3}}], v[{b}:{b + 3}], {c}")
            elif kind == "V":
                a = nexta()
                fr["pre"].append(f"v_xor_b32 v{a}, {(f & 7) << 5}, v5")
                off = 256 * (f >> 3)
                fr["reads"] = [f"ds_read_b64_tr_b16 a[{{fb}}:{{fb1}}], v{a} offset:{off}",
                               f"ds_read_b64_tr_b16 a[{{fb2}}:{{fb3}}], v{a} offset:{off + 8192}"]
                for rt in range(3):
                    d = 64 * rt + 4 * f
                    c = "0" if t == 0 else f"a[{d}:{d + 3}]"
                    b = PR + 8 * rt + 4 * (t & 1)
                    fr["mf"].append(f"v_mfma_f32_16x16x32_bf16 a[{d}:{d + 3}], a[{{fb}}:{{fb3}}], v[{b}:{b + 3}], {c}")
            else:
                s, tl = f >> 1, f & 1
                if tl == 0:
                    a = nexta(); cur = a
                    fr["pre"].append(f"v_xor_b32 v{a}, {(s & 3) << 6}, v5")
                a = cur
                off = 256 * (s >> 2) + 8192 * tl
                fr["reads"] = [f"ds_read_b128 a[{{fb}}:{{fb3}}], v{a} offset:{off}"]
                ch = t >> 1
                for rt in range(3):
                    d = SR + 48 * (ch & 1) + 16 * rt + 4 * (2 * (t & 1) + tl)
                    c = "0" if s == 0 else f"v[{d}:{d + 3}]"
                    q = QR + 32 * rt + 4 * s
                    fr["mf"].append(f"v_mfma_f32_16x16x32_bf16 v[{d}:{d + 3}], a[{{fb}}:{{fb3}}], v[{q}:{q + 3}], {c}")
            frags.append(fr)
    N = len(frags)
    post = ["s_nop 7", "s_nop 1"]
    for rt in range(3):
        for s in range(8):
            for q in range(4):
                a = 64 * rt + 8 * s + 2 * q
                post += [f"v_accvgpr_read_b32 v{VT}, a{a}", f"v_accvgpr_read_b32 v{VT+1}, a{a+1}",
                         f"v_cvt_pk_bf16_f32 v{QR + 32*rt + 4*s + q}, v{VT}, v{VT+1}"]
    post += ["s_nop 1"]
    frags[14 * 16 - 1]["post"] = post
    rare = []
    fillers = {}
    tidx = {tk: n for n, tk in enumerate(TILES)}
    for c in range(8):
        F = softmax_fillers(c, rare)
        if c < 7:
            p0 = tidx[("K", 2 * c + 2)]
            h = len(F) // 2
            fillers[p0] = F[:h]
            fillers[p0 + 1] = F[h:]
        else:
            frags[(tidx[("V", 13)] + 1) * 16 - 1]["post"] = ["s_nop 7"] + F + ["s_nop 1"]

    def fmt(s, i):
        fb = FBA + 4 * (i % 8)
        return s.format(fb=fb, fb1=fb + 1, fb2=fb + 2, fb3=fb + 3)
    def issue_reads(i):
        for x in frags[i]["pre"]:
            e("  " + x)
        for x in frags[i]["reads"]:
            e("  " + fmt(x, i))
    e("  s_waitcnt vmcnt(0)")
    for i in range(LOOK):
        issue_reads(i)
    fpos = {}
    for i in range(N):
        out = sum(len(frags[k]["reads"]) for k in range(i + 1, min(i + LOOK, N)))
        e(f"  s_waitcnt lgkmcnt({out})")
        ph = frags[i]["phase"]
        F = fillers.get(ph, [])
        fi = i % 16
        for mi, m in enumerate(frags[i]["mf"]):
            if MODE != "nocompute":
                e("  " + fmt(m, i))
            k = fi * 3 + mi
            if F and k >= 3:
                lo = (k - 3) * len(F) // 45
                hi = (k - 2) * len(F) // 45
                for x in F[lo:hi]:
                    e("  " + x)
        if i + LOOK < N:
            issue_reads(i + LOOK)
        for x in frags[i]["post"]:
            e("  " + x)
    e("  s_nop 7")
    e("  s_nop 1")
    for rt in range(3):
        l = VL + rt
        e(f"  v_mov_b32 v{VT}, v{l}")
        e("  s_nop 1")
        e(f"  v_permlane32_swap_b32 v{l}, v{VT}")
        e(f"  v_add_f32 v{l}, v{l}, v{VT}")
        e(f"  v_mov_b32 v{VT}, v{l}")
        e("  s_nop 1")
        e(f"  v_permlane16_swap_b32 v{l}, v{VT}")
        e(f"  v_add_f32 v{l}, v{l}, v{VT}")
        e(f"  v_rcp_f32 v{l}, v{l}")
    e("  s_mul_i32 s4, s28, 1152")
    e("  s_mul_i32 s5, s29, 144")
    e("  s_add_u32 s4, s4, s5")
    e("  s_mul_i32 s5, s3, 48")
    e("  s_add_u32 s4, s4, s5")
    e("  v_and_b32 v9, 15, v1")
    e("  v_add_u32 v9, s4, v9")
    e("  v_lshlrev_b32 v9, 13, v9")
    e("  v_lshrrev_b32 v8, 4, v1")
    e("  v_lshl_add_u32 v9, v8, 3, v9")
    e("  s_lshl_b32 s5, s30, 9")
    e("  v_add_u32 v9, s5, v9")
    k = 0
    for rt in range(3):
        e(f"  s_mov_b32 s53, {rt * 16 * 8192}")
        for t in range(16):
            a = 64 * rt + 4 * t
            tb = 128 + 8 * (k % 8); k += 1
            for r in range(4):
                e(f"  v_accvgpr_read_b32 v{tb + r}, a{a + r}")
            for r in range(4):
                e(f"  v_mul_f32 v{tb + r}, v{VL + rt}, v{tb + r}")
            e(f"  v_cvt_pk_bf16_f32 v{tb + 4}, v{tb}, v{tb + 1}")
            e(f"  v_cvt_pk_bf16_f32 v{tb + 5}, v{tb + 2}, v{tb + 3}")
            e(f"  buffer_store_dwordx2 v[{tb + 4}:{tb + 5}], v9, s[24:27], s53 offen offset:{32 * t}")
    e("  s_endpgm")
    for lr in rare:
        rare_block(lr)
    e("L_loader:")
    e("  v_lshrrev_b32 v10, 5, v1")
    e("  v_and_b32 v11, 31, v1")
    for j in range(4):
        e(f"  v_add_u32 v12, {2 * j}, v10")
        e(f"  v_lshlrev_b32 v13, 1, v12")
        e(f"  v_xor_b32 v13, v13, v11")
        e(f"  v_lshlrev_b32 v13, 4, v13")
        e(f"  v_lshl_add_u32 v{2 + j}, v12, 9, v13")
        e(f"  v_lshl_add_u32 v{6 + j}, v12, 13, v13")
    def issue(n):
        kind, t = TILES[n]
        sbase = (n % NSLOT) * SLOT
        if MODE == "nodma" and kind != "W" and n >= 20:
            return
        for j in range(16):
            if kind == "W":
                srd, so, v = 12, (32 * t + 8 * (j >> 2)) * 8192, 6 + (j & 3)
            else:
                srd, so, v = (16 if kind == "K" else 20), t * 16384 + (j >> 2) * 4096, 2 + (j & 3)
            e(f"  s_mov_b32 m0, {sbase + 1024 * j}")
            e(f"  s_mov_b32 s53, {so}")
            e(f"  buffer_load_dwordx4 v{v}, s[{srd}:{srd + 3}], s53 offen lds")
    for n in range(PD):
        issue(n)
    for n in range(NT):
        last = min(n + PD - 1, NT - 1)
        e(f"  s_waitcnt vmcnt({16 * (last - n)})")
        e("  s_barrier")
        if n + PD < NT:
            issue(n + PD)
    e("L_k1_end:")
    e("  s_endpgm")

def kernel2():
    DEPTH = 4
    ACC2 = 64
    BF = 128
    AF = 16
    e(".p2align 8")
    e("oproj_kernel:")
    e("  s_cmp_ge_u32 s2, 252")
    e("  s_cbranch_scc1 L_k2_end")
    e("  s_load_dwordx2 s[32:33], s[0:1], 32")
    e("  s_load_dwordx2 s[34:35], s[0:1], 72")
    e("  s_load_dwordx2 s[36:37], s[0:1], 80")
    e("  s_load_dwordx2 s[38:39], s[0:1], 96")
    e("  s_and_b32 s4, s2, 7")
    e("  s_lshr_b32 s5, s2, 3")
    e("  s_lshl_b32 s6, s4, 5")
    e("  s_mul_i32 s7, s4, 31")
    e("  s_add_u32 s7, s7, 4")
    e("  s_cmp_lt_u32 s4, 4")
    e("  s_cselect_b32 s6, s6, s7")
    e("  s_add_u32 s6, s6, s5")
    e("  s_cmp_ge_u32 s6, 126")
    e("  s_cselect_b32 s28, 1, 0")
    e("  s_mul_i32 s4, s28, 126")
    e("  s_sub_u32 s4, s6, s4")
    e("  s_mul_i32 s29, s4, 9363")
    e("  s_lshr_b32 s29, s29, 16")
    e("  s_mul_i32 s5, s29, 7")
    e("  s_sub_u32 s30, s4, s5")
    e("  v_lshrrev_b32 v1, 6, v0")
    e("  s_nop 0")
    e("  v_readfirstlane_b32 s3, v1")
    e("  v_and_b32 v1, 63, v0")
    e("  s_waitcnt lgkmcnt(0)")
    e("  s_cmp_eq_u32 s28, 0")
    e("  s_cselect_b32 s32, s32, s34")
    e("  s_cselect_b32 s33, s33, s35")
    e("  s_mov_b32 s8, s32")
    e("  s_and_b32 s9, s33, 0xffff")
    e(f"  s_mov_b32 s10, {4096 * 896}")
    e("  s_mov_b32 s11, 0x00020000")
    e("  s_mov_b32 s12, s38")
    e("  s_and_b32 s13, s39, 0xffff")
    e(f"  s_mov_b32 s14, {2 * 1152 * 8192}")
    e("  s_mov_b32 s15, 0x00020000")
    e("  s_mov_b32 s16, s36")
    e("  s_and_b32 s17, s37, 0xffff")
    e(f"  s_mov_b32 s18, {1152 * 1792}")
    e("  s_mov_b32 s19, 0x00020000")
    e("  s_lshl_b32 s50, s3, 14")
    e("  v_and_b32 v9, 15, v1")
    e("  v_lshrrev_b32 v10, 4, v1")
    e("  s_mul_i32 s4, s28, 1152")
    e("  s_lshl_b32 s5, s29, 6")
    e("  s_add_u32 s4, s4, s5")
    e("  v_add_u32 v2, s4, v9")
    e("  v_lshlrev_b32 v2, 13, v2")
    e("  v_lshl_add_u32 v2, v10, 4, v2")
    e("  s_lshl_b32 s5, s3, 10")
    e("  v_add_u32 v2, s5, v2")
    e("  v_lshrrev_b32 v11, 3, v1")
    e("  v_bfe_u32 v12, v11, 1, 1")
    e("  v_lshlrev_b32 v12, 1, v12")
    e("  v_and_b32 v13, 7, v1")
    e("  v_xor_b32 v12, v12, v13")
    e("  v_lshlrev_b32 v12, 4, v12")
    e("  s_lshl_b32 s5, s3, 9")
    e("  v_add_u32 v11, s5, v11")
    e("  v_mul_u32_u24 v11, 896, v11")
    e("  v_add_u32 v3, v11, v12")
    e("  s_lshl_b32 s5, s30, 7")
    e("  v_add_u32 v3, s5, v3")
    e("  v_xor_b32 v14, 64, v3")
    e("  v_bfe_u32 v11, v1, 2, 2")
    e("  v_lshl_add_u32 v11, v10, 3, v11")
    e("  v_bfe_u32 v12, v1, 3, 1")
    e("  v_bfe_u32 v13, v1, 4, 1")
    e("  v_lshl_add_u32 v12, v13, 1, v12")
    e("  v_lshlrev_b32 v12, 1, v12")
    e("  v_bfe_u32 v13, v1, 1, 1")
    e("  v_or_b32 v12, v12, v13")
    e("  v_lshlrev_b32 v12, 4, v12")
    e("  v_lshl_add_u32 v4, v11, 7, v12")
    e("  v_and_b32 v13, 1, v1")
    e("  v_lshl_add_u32 v4, v13, 3, v4")
    e("  v_add_u32 v4, s50, v4")

    def loads(ks):
        sl = ks % DEPTH
        for j in range(4):
            e(f"  s_add_u32 m0, s50, {sl * 4096 + j * 1024}")
            e(f"  s_mov_b32 s53, {(32 * ks + 8 * j) * 896}")
            e(f"  buffer_load_dwordx4 v{3 if j % 2 == 0 else 14}, s[8:11], s53 offen lds")
        for mi in range(4):
            r = BF + 16 * sl + 4 * mi
            e(f"  s_mov_b32 s53, {mi * 131072}")
            e(f"  buffer_load_dwordx4 v[{r}:{r + 3}], v2, s[12:15], s53 offen offset:{64 * ks}")
    for ks in range(DEPTH):
        loads(ks)
    for ks in range(16):
        sl = ks % DEPTH
        after = min(ks + DEPTH - 1, 15) - ks
        e(f"  s_waitcnt vmcnt({8 * after})")
        for ni in range(4):
            e(f"  v_xor_b32 v{5 + ni}, {ni << 5}, v4")
            e(f"  ds_read_b64_tr_b16 v[{AF + 4 * ni}:{AF + 4 * ni + 1}], v{5 + ni} offset:{sl * 4096}")
            e(f"  ds_read_b64_tr_b16 v[{AF + 4 * ni + 2}:{AF + 4 * ni + 3}], v{5 + ni} offset:{sl * 4096 + 512}")
        for ni in range(4):
            e(f"  s_waitcnt lgkmcnt({2 * (3 - ni)})")
            for mi in range(4):
                d = ACC2 + 4 * (4 * ni + mi)
                c = "0" if ks == 0 else f"v[{d}:{d + 3}]"
                b = BF + 16 * sl + 4 * mi
                e(f"  v_mfma_f32_16x16x32_bf16 v[{d}:{d + 3}], v[{AF + 4 * ni}:{AF + 4 * ni + 3}], v[{b}:{b + 3}], {c}")
        if ks + DEPTH < 16:
            loads(ks + DEPTH)
    e("  s_nop 7")
    e("  s_nop 1")
    e("  v_lshlrev_b32 v5, 4, v1")
    e("  v_add_u32 v5, s50, v5")
    for t in range(16):
        d = ACC2 + 4 * t
        e(f"  ds_write_b128 v5, v[{d}:{d + 3}] offset:{1024 * t}")
    e("  s_waitcnt lgkmcnt(0)")
    e("  s_barrier")
    e("  v_lshlrev_b32 v5, 4, v1")
    e("  s_lshl_b32 s4, s3, 11")
    e("  v_add_u32 v5, s4, v5")
    e("  v_add_u32 v6, 0x10000, v5")
    for tt in range(2):
        for p in range(8):
            r = 16 + 4 * p + 32 * tt
            if p < 4:
                e(f"  ds_read_b128 v[{r}:{r + 3}], v5 offset:{16384 * p + 1024 * tt}")
            else:
                e(f"  ds_read_b128 v[{r}:{r + 3}], v6 offset:{16384 * (p - 4) + 1024 * tt}")
    e("  s_waitcnt lgkmcnt(0)")
    for tt in range(2):
        b0 = 16 + 32 * tt
        for p in range(1, 8):
            for r in range(4):
                e(f"  v_add_f32 v{b0 + r}, v{b0 + r}, v{b0 + 4 * p + r}")
    e("  s_and_b32 s4, s3, 1")
    e("  s_lshl_b32 s4, s4, 5")
    e("  s_lshl_b32 s5, s29, 6")
    e("  s_add_u32 s4, s4, s5")
    e("  v_add_u32 v9, s4, v9")
    e("  v_mul_u32_u24 v9, 1792, v9")
    e("  v_lshl_add_u32 v9, v10, 3, v9")
    e("  s_mul_i32 s4, s28, 896")
    e("  s_lshl_b32 s5, s30, 7")
    e("  s_add_u32 s4, s4, s5")
    e("  s_lshr_b32 s5, s3, 1")
    e("  s_lshl_b32 s5, s5, 5")
    e("  s_add_u32 s4, s4, s5")
    e("  v_add_u32 v9, s4, v9")
    for tt in range(2):
        b0 = 16 + 32 * tt
        e(f"  v_cvt_pk_bf16_f32 v{b0}, v{b0}, v{b0 + 1}")
        e(f"  v_cvt_pk_bf16_f32 v{b0 + 1}, v{b0 + 2}, v{b0 + 3}")
        e(f"  s_mov_b32 s53, {tt * 16 * 1792}")
        e(f"  buffer_store_dwordx2 v[{b0}:{b0 + 1}], v9, s[16:19], s53 offen")
    e("L_k2_end:")
    e("  s_endpgm")

def main():
    hdr = open(f"cdna_kernels/{NAME}.s.ref").read().splitlines()
    for line in hdr:
        if line.startswith("; @launch"):
            break
        if "@launch" in line:
            continue
        e(line)
    e(f"; @launch kernel=attn_kernel grid=(256,1,1) block=(256,1,1) lds={NSLOT * SLOT}")
    e("; @launch kernel=oproj_kernel grid=(252,1,1) block=(512,1,1) lds=131072")
    e('.amdgcn_target "amdgcn-amd-amdhsa--gfx950"')
    e(".text")
    e(".globl attn_kernel")
    e(".p2align 8")
    e(".type attn_kernel,@function")
    kernel1()
    e(".globl oproj_kernel")
    e(".type oproj_kernel,@function")
    kernel2()
    e('.section .rodata,"a"')
    for name, nv, ao in (("attn_kernel", 480, 256), ("oproj_kernel", 192, 192)):
        e(".p2align 6")
        e(f".amdhsa_kernel {name}")
        e(f"  .amdhsa_next_free_vgpr {nv}")
        e("  .amdhsa_next_free_sgpr 64")
        e(f"  .amdhsa_accum_offset {ao}")
        e("  .amdhsa_group_segment_fixed_size 0")
        e("  .amdhsa_kernarg_size 104")
        e("  .amdhsa_user_sgpr_count 2")
        e("  .amdhsa_user_sgpr_kernarg_segment_ptr 1")
        e("  .amdhsa_system_sgpr_workgroup_id_x 1")
        e(".end_amdhsa_kernel")
    open(OUT, "w").write("\n".join(x for x in L if x is not None) + "\n")

main()
```

```python
import sys, os
MODE = os.environ.get("MODE", "")

NAME = "concat_heads__mha_block_cached__gqa_block_cached__near_ridge"
OUT = os.environ.get("OUT", f"cdna_kernels/{NAME}.s")

L = []
def e(s=""):
    L.append(s)

_lab = [0]
def newlabel(p="L"):
    _lab[0] += 1
    return f"{p}_{_lab[0]}"

NSLOT = 6
SLOT = 16384
PD = 4
LOOK = int(os.environ.get("LOOK", "7"))
FBA = 192
QR = 32
SR = 128
PR = 224
VM = 10
VL = 13
VX = 16
VT = 19
def xreg(rt, ks):
    return 32 + 56 * rt + 4 * ks

TILES = [("W", m) for m in range(14)]
TILES += [("K", 0), ("K", 1)]
for c in range(8):
    if c < 7:
        TILES += [("K", 2 * c + 2), ("K", 2 * c + 3)]
    TILES += [("V", 2 * c), ("V", 2 * c + 1)]
NT = len(TILES)
assert NT == 46

def softmax_fillers(c, rare_blocks):
    F = []
    sb = SR + 48 * (c & 1)
    for rt in range(3):
        S = [sb + 16 * rt + i for i in range(16)]
        t = VT + 3 * rt
        x = VX + rt
        F += [f"v_max3_f32 v{t}, v{S[0]}, v{S[1]}, v{S[2]}",
              f"v_max3_f32 v{t+1}, v{S[3]}, v{S[4]}, v{S[5]}",
              f"v_max3_f32 v{t+2}, v{S[6]}, v{S[7]}, v{S[8]}",
              f"v_max3_f32 v{t}, v{t}, v{S[9]}, v{S[10]}",
              f"v_max3_f32 v{t+1}, v{t+1}, v{S[11]}, v{S[12]}",
              f"v_max3_f32 v{t+2}, v{t+2}, v{S[13]}, v{S[14]}",
              f"v_max3_f32 v{t}, v{t}, v{t+1}, v{S[15]}",
              f"v_max_f32 v{x}, v{t}, v{t+2}",
              f"v_mov_b32 v{t}, v{x}",
              "s_nop 1",
              f"v_permlane32_swap_b32 v{x}, v{t}",
              f"v_max_f32 v{x}, v{x}, v{t}",
              f"v_mov_b32 v{t}, v{x}",
              "s_nop 1",
              f"v_permlane16_swap_b32 v{x}, v{t}",
              f"v_max_f32 v{x}, v{x}, v{t}",
              f"v_mul_f32 v{x}, s51, v{x}"]
    if c == 0:
        for rt in range(3):
            F += [f"v_mov_b32 v{VM+rt}, v{VX+rt}"]
    else:
        lr = f"Lrare_{c}"
        F += [f"v_sub_f32 v{VT}, v{VX}, v{VM}",
              f"v_sub_f32 v{VT+1}, v{VX+1}, v{VM+1}",
              f"v_sub_f32 v{VT+2}, v{VX+2}, v{VM+2}",
              f"v_max3_f32 v{VT}, v{VT}, v{VT+1}, v{VT+2}",
              f"v_cmp_lt_f32 vcc, s52, v{VT}",
              f"s_cbranch_vccnz {lr}\n{lr}_ret:"]
        rare_blocks.append(lr)
    for rt in range(3):
        S = [sb + 16 * rt + i for i in range(16)]
        for i in range(16):
            F.append(f"v_fma_f32 v{S[i]}, v{S[i]}, s51, -v{VM+rt}")
        for i in range(16):
            F.append(f"v_exp_f32 v{S[i]}, v{S[i]}")
    for rt in range(3):
        S = [sb + 16 * rt + i for i in range(16)]
        t = VT + 3 * rt
        F += [f"v_add_f32 v{t}, v{S[0]}, v{S[1]}",
              f"v_add_f32 v{t+1}, v{S[2]}, v{S[3]}"]
        for i in range(4, 16, 2):
            F += [f"v_add_f32 v{t}, v{t}, v{S[i]}",
                  f"v_add_f32 v{t+1}, v{t+1}, v{S[i+1]}"]
        F += [f"v_add_f32 v{t}, v{t}, v{t+1}"]
        if c == 0:
            F += [f"v_mov_b32 v{VL+rt}, v{t}"]
        else:
            F += [f"v_add_f32 v{VL+rt}, v{VL+rt}, v{t}"]
    for rt in range(3):
        S = [sb + 16 * rt + i for i in range(16)]
        for j in range(2):
            for q in range(4):
                F.append(f"v_cvt_pk_bf16_f32 v{PR + 8*rt + 4*j + q}, v{S[8*j + 2*q]}, v{S[8*j + 2*q + 1]}")
    return F

def rare_block(lr):
    e(f"{lr}:")
    for rt in range(3):
        t = VT + 3 * rt
        e(f"  v_max_f32 v{t}, v{VM+rt}, v{VX+rt}")
        e(f"  v_sub_f32 v{t+1}, v{VM+rt}, v{t}")
        e(f"  v_exp_f32 v{t+1}, v{t+1}")
        e(f"  v_mov_b32 v{VM+rt}, v{t}")
        e(f"  v_mul_f32 v{VL+rt}, v{VL+rt}, v{t+1}")
        for i in range(64):
            a = 64 * rt + i
            e(f"  v_accvgpr_read_b32 v{t+2}, a{a}")
            e(f"  v_mul_f32 v{t+2}, v{t+2}, v{t+1}")
            e(f"  v_accvgpr_write_b32 a{a}, v{t+2}")
    e("  s_nop 1")
    e(f"  s_branch {lr}_ret")

def kernel1():
    e(f"attn_kernel:")
    e("  s_cmp_ge_u32 s2, 256")
    e("  s_cbranch_scc1 L_k1_end")
    e("  s_load_dwordx8 s[32:39], s[0:1], 0")
    e("  s_load_dwordx8 s[40:47], s[0:1], 40")
    e("  s_load_dwordx2 s[48:49], s[0:1], 96")
    e("  s_lshr_b32 s28, s2, 7")
    e("  s_lshr_b32 s29, s2, 4")
    e("  s_and_b32 s29, s29, 7")
    e("  s_and_b32 s30, s2, 15")
    e("  v_lshrrev_b32 v1, 6, v0")
    e("  s_nop 0")
    e("  v_readfirstlane_b32 s3, v1")
    e("  v_and_b32 v1, 63, v0")
    e("  s_waitcnt lgkmcnt(0)")
    e("  s_cmp_eq_u32 s28, 0")
    for i in range(8):
        e(f"  s_cselect_b32 s{32 + i}, s{32 + i}, s{40 + i}")
    e("  s_mul_i32 s4, s29, 129024")
    e("  s_add_u32 s8, s32, s4")
    e("  s_addc_u32 s9, s33, 0")
    e("  s_and_b32 s9, s9, 0xffff")
    e("  s_mov_b32 s10, 129024")
    e("  s_mov_b32 s11, 0x00020000")
    e("  s_lshl_b32 s4, s30, 9")
    e("  s_add_u32 s12, s38, s4")
    e("  s_addc_u32 s13, s39, 0")
    e("  s_and_b32 s13, s13, 0xffff")
    e(f"  s_sub_u32 s14, {448 * 8192}, s4")
    e("  s_mov_b32 s15, 0x00020000")
    e("  s_lshl_b32 s4, s29, 4")
    e("  s_add_u32 s4, s4, s30")
    e("  s_lshr_b32 s5, s4, 14")
    e("  s_lshl_b32 s4, s4, 18")
    e("  s_add_u32 s16, s34, s4")
    e("  s_addc_u32 s17, s35, s5")
    e("  s_and_b32 s17, s17, 0xffff")
    e("  s_mov_b32 s18, 262144")
    e("  s_mov_b32 s19, 0x00020000")
    e("  s_add_u32 s20, s36, s4")
    e("  s_addc_u32 s21, s37, s5")
    e("  s_and_b32 s21, s21, 0xffff")
    e("  s_mov_b32 s22, 262144")
    e("  s_mov_b32 s23, 0x00020000")
    e("  s_mov_b32 s24, s48")
    e("  s_and_b32 s25, s49, 0xffff")
    e(f"  s_mov_b32 s26, {2 * 1152 * 8192}")
    e("  s_mov_b32 s27, 0x00020000")
    e("  s_mov_b32 s51, 0x3db8aa3b")
    e("  s_mov_b32 s52, 0x41000000")
    e("  s_cmp_eq_u32 s3, 3")
    e("  s_cbranch_scc1 L_loader")
    e("  v_and_b32 v6, 15, v1")
    e("  v_lshrrev_b32 v7, 4, v1")
    e("  s_mul_i32 s5, s3, 48")
    e("  v_add_u32 v8, s5, v6")
    e("  v_mul_u32_u24 v8, 896, v8")
    e("  v_lshl_add_u32 v8, v7, 3, v8")
    for rt in range(3):
        e(f"  s_mov_b32 s53, {rt * 16 * 896}")
        for ks in range(14):
            r = xreg(rt, ks)
            e(f"  buffer_load_dwordx2 v[{r}:{r + 1}], v8, s[8:11], s53 offen offset:{64 * ks}")
            e(f"  buffer_load_dwordx2 v[{r + 2}:{r + 3}], v8, s[8:11], s53 offen offset:{64 * ks + 32}")
    e("  v_and_b32 v9, 7, v6")
    e("  v_lshlrev_b32 v9, 1, v9")
    e("  v_xor_b32 v9, v9, v7")
    e("  v_lshlrev_b32 v9, 4, v9")
    e("  v_lshl_add_u32 v2, v6, 9, v9")
    e("  v_lshrrev_b32 v8, 2, v1")
    e("  v_and_b32 v9, 7, v8")
    e("  v_lshlrev_b32 v9, 1, v9")
    e("  v_bfe_u32 v6, v1, 1, 1")
    e("  v_xor_b32 v6, v6, v9")
    e("  v_lshlrev_b32 v6, 4, v6")
    e("  v_lshl_add_u32 v3, v8, 9, v6")
    e("  v_and_b32 v6, 1, v1")
    e("  v_lshl_add_u32 v3, v6, 3, v3")
    e("  v_and_b32 v6, 3, v1")
    e("  v_xor_b32 v6, v6, v9")
    e("  v_lshlrev_b32 v6, 4, v6")
    e("  v_lshl_add_u32 v4, v8, 9, v6")

    frags = []
    atmp = [6, 7, 8, 9]
    ac = [0]
    def nexta():
        ac[0] += 1
        return atmp[ac[0] % 4]
    for n, (kind, t) in enumerate(TILES):
        sbase = (n % NSLOT) * SLOT
        for f in range(16):
            fr = dict(pre=[], reads=[], mf=[], post=[], phase=n)
            if f == 0:
                fr["pre"].append("s_barrier")
                a0 = {"W": 4, "K": 2, "V": 3}[kind]
                fr["pre"].append(f"v_add_u32 v5, {sbase}, v{a0}")
            if kind == "W":
                s, hb = f >> 1, f & 1
                if hb == 0:
                    a = nexta(); cur = a
                    fr["pre"].append(f"v_xor_b32 v{a}, {(s & 3) << 6}, v5")
                a = cur
                off = 256 * (s >> 2) + 8 * hb
                fr["reads"] = [f"ds_read_b64_tr_b16 a[{{fb}}:{{fb1}}], v{a} offset:{off}",
                               f"ds_read_b64_tr_b16 a[{{fb2}}:{{fb3}}], v{a} offset:{off + 8192}"]
                for rt in range(3):
                    d = 64 * rt + 4 * f
                    c = "0" if t == 0 else f"a[{d}:{d + 3}]"
                    b = xreg(rt, t)
                    fr["mf"].append(f"v_mfma_f32_16x16x32_bf16 a[{d}:{d + 3}], a[{{fb}}:{{fb3}}], v[{b}:{b + 3}], {c}")
            elif kind == "V":
                a = nexta()
                fr["pre"].append(f"v_xor_b32 v{a}, {(f & 7) << 5}, v5")
                off = 256 * (f >> 3)
                fr["reads"] = [f"ds_read_b64_tr_b16 a[{{fb}}:{{fb1}}], v{a} offset:{off}",
                               f"ds_read_b64_tr_b16 a[{{fb2}}:{{fb3}}], v{a} offset:{off + 8192}"]
                for rt in range(3):
                    d = 64 * rt + 4 * f
                    c = "0" if t == 0 else f"a[{d}:{d + 3}]"
                    b = PR + 8 * rt + 4 * (t & 1)
                    fr["mf"].append(f"v_mfma_f32_16x16x32_bf16 a[{d}:{d + 3}], a[{{fb}}:{{fb3}}], v[{b}:{b + 3}], {c}")
            else:
                s, tl = f >> 1, f & 1
                if tl == 0:
                    a = nexta(); cur = a
                    fr["pre"].append(f"v_xor_b32 v{a}, {(s & 3) << 6}, v5")
                a = cur
                off = 256 * (s >> 2) + 8192 * tl
                fr["reads"] = [f"ds_read_b128 a[{{fb}}:{{fb3}}], v{a} offset:{off}"]
                ch = t >> 1
                for rt in range(3):
                    d = SR + 48 * (ch & 1) + 16 * rt + 4 * (2 * (t & 1) + tl)
                    c = "0" if s == 0 else f"v[{d}:{d + 3}]"
                    q = QR + 32 * rt + 4 * s
                    fr["mf"].append(f"v_mfma_f32_16x16x32_bf16 v[{d}:{d + 3}], a[{{fb}}:{{fb3}}], v[{q}:{q + 3}], {c}")
            frags.append(fr)
    N = len(frags)
    post = ["s_nop 7", "s_nop 1"]
    for rt in range(3):
        for s in range(8):
            for q in range(4):
                a = 64 * rt + 8 * s + 2 * q
                post += [f"v_accvgpr_read_b32 v{VT}, a{a}", f"v_accvgpr_read_b32 v{VT+1}, a{a+1}",
                         f"v_cvt_pk_bf16_f32 v{QR + 32*rt + 4*s + q}, v{VT}, v{VT+1}"]
    post += ["s_nop 1"]
    frags[14 * 16 - 1]["post"] = post
    rare = []
    fillers = {}
    tidx = {tk: n for n, tk in enumerate(TILES)}
    for c in range(8):
        F = softmax_fillers(c, rare)
        if c < 7:
            p0 = tidx[("K", 2 * c + 2)]
            h = len(F) // 2
            fillers[p0] = F[:h]
            fillers[p0 + 1] = F[h:]
        else:
            frags[(tidx[("V", 13)] + 1) * 16 - 1]["post"] = ["s_nop 7"] + F + ["s_nop 1"]

    def fmt(s, i):
        fb = FBA + 4 * (i % 8)
        return s.format(fb=fb, fb1=fb + 1, fb2=fb + 2, fb3=fb + 3)
    stamps = []
    def stamp():
        if "stamp" not in MODE:
            return
        k = len(stamps)
        stamps.append(k)
        e("  s_memtime s[60:61]")
        e("  s_waitcnt lgkmcnt(0)")
        e(f"  s_mov_b32 s{64 + k}, s60")
    def issue_reads(i):
        if i % 32 == 0 or i == 14 * 16:
            stamp()
        for x in frags[i]["pre"]:
            e("  " + x)
        for x in frags[i]["reads"]:
            e("  " + fmt(x, i))
    stamp()
    e("  s_waitcnt vmcnt(0)")
    for i in range(LOOK):
        issue_reads(i)
    fpos = {}
    for i in range(N):
        out = sum(len(frags[k]["reads"]) for k in range(i + 1, min(i + LOOK, N)))
        e(f"  s_waitcnt lgkmcnt({out})")
        ph = frags[i]["phase"]
        F = fillers.get(ph, [])
        fi = i % 16
        for mi, m in enumerate(frags[i]["mf"]):
            if "nocompute" not in MODE:
                e("  " + fmt(m, i))
            k = fi * 3 + mi
            if F and k >= 3:
                lo = (k - 3) * len(F) // 45
                hi = (k - 2) * len(F) // 45
                for x in F[lo:hi]:
                    e("  " + x)
        if i + LOOK < N:
            issue_reads(i + LOOK)
        for x in frags[i]["post"]:
            e("  " + x)
    e("  s_nop 7")
    e("  s_nop 1")
    for rt in range(3):
        l = VL + rt
        e(f"  v_mov_b32 v{VT}, v{l}")
        e("  s_nop 1")
        e(f"  v_permlane32_swap_b32 v{l}, v{VT}")
        e(f"  v_add_f32 v{l}, v{l}, v{VT}")
        e(f"  v_mov_b32 v{VT}, v{l}")
        e("  s_nop 1")
        e(f"  v_permlane16_swap_b32 v{l}, v{VT}")
        e(f"  v_add_f32 v{l}, v{l}, v{VT}")
        e(f"  v_rcp_f32 v{l}, v{l}")
    e("  s_barrier")
    e("  s_mul_i32 s4, s3, 25344")
    e("  v_and_b32 v9, 15, v1")
    e("  v_mul_u32_u24 v9, 528, v9")
    e("  v_lshrrev_b32 v8, 4, v1")
    e("  v_lshl_add_u32 v9, v8, 3, v9")
    e("  v_add_u32 v9, s4, v9")
    k = 0
    for rt in range(3):
        for t in range(16):
            a = 64 * rt + 4 * t
            tb = 128 + 8 * (k % 8); k += 1
            for r in range(4):
                e(f"  v_accvgpr_read_b32 v{tb + r}, a{a + r}")
            for r in range(4):
                e(f"  v_mul_f32 v{tb + r}, v{VL + rt}, v{tb + r}")
            e(f"  v_cvt_pk_bf16_f32 v{tb + 4}, v{tb}, v{tb + 1}")
            e(f"  v_cvt_pk_bf16_f32 v{tb + 5}, v{tb + 2}, v{tb + 3}")
            e(f"  ds_write_b64 v9, v[{tb + 4}:{tb + 5}] offset:{rt * 16 * 528 + 32 * t}")
    e("  v_lshrrev_b32 v8, 5, v1")
    e("  v_and_b32 v7, 31, v1")
    e("  v_mul_u32_u24 v9, 528, v8")
    e("  v_lshl_add_u32 v9, v7, 4, v9")
    e("  v_add_u32 v9, s4, v9")
    e("  s_lshl_b32 s4, s28, 4")
    e("  s_add_u32 s4, s4, s30")
    e("  s_mul_i32 s4, s4, 1152")
    e("  s_mul_i32 s5, s29, 144")
    e("  s_add_u32 s4, s4, s5")
    e("  s_mul_i32 s5, s3, 48")
    e("  s_add_u32 s4, s4, s5")
    e("  s_lshl_b32 s4, s4, 9")
    e("  v_lshlrev_b32 v8, 9, v8")
    e("  v_lshl_add_u32 v8, v7, 4, v8")
    e("  s_waitcnt lgkmcnt(0)")
    for hh in range(2):
        for i in range(12 * hh, 12 * hh + 12):
            e(f"  ds_read_b128 v[{32 + 4 * i}:{35 + 4 * i}], v9 offset:{2 * i * 528}")
        for i in range(12 * hh, 12 * hh + 12):
            e(f"  s_waitcnt lgkmcnt({12 * hh + 11 - i})")
            e(f"  s_add_u32 s5, s4, {1024 * i}")
            e(f"  buffer_store_dwordx4 v[{32 + 4 * i}:{35 + 4 * i}], v8, s[24:27], s5 offen")
    if "stamp" in MODE:
        stamp()
        e("  s_lshl_b32 s4, s2, 2")
        e("  s_add_u32 s4, s4, s3")
        e("  s_lshl_b32 s4, s4, 8")
        e(f"  s_add_u32 s4, s4, {2 * 1152 * 8192}")
        e(f"  s_mov_b32 s26, {2 * 1152 * 8192 + 1024 * 256}")
        for k in stamps:
            e(f"  v_mov_b32 v20, s{64 + k}")
            e(f"  v_mov_b32 v21, 0")
            e(f"  buffer_store_dword v20, v21, s[24:27], s4 offen offset:{4 * k}")
    e("  s_endpgm")
    for lr in rare:
        rare_block(lr)
    e("L_loader:")
    e("  v_lshrrev_b32 v10, 5, v1")
    e("  v_and_b32 v11, 31, v1")
    for j in range(4):
        e(f"  v_add_u32 v12, {2 * j}, v10")
        e(f"  v_lshlrev_b32 v13, 1, v12")
        if "noswz" in MODE:
            e(f"  v_mov_b32 v13, v11")
        else:
            e(f"  v_xor_b32 v13, v13, v11")
        e(f"  v_lshlrev_b32 v13, 4, v13")
        e(f"  v_lshl_add_u32 v{2 + j}, v12, 9, v13")
        e(f"  v_lshl_add_u32 v{6 + j}, v12, 13, v13")
    def issue(n):
        kind, t = TILES[n]
        sbase = (n % NSLOT) * SLOT
        if "nodma" in MODE and kind != "W" and n >= 20:
            return
        for j in range(16):
            if kind == "W":
                srd, so, v = 12, (32 * t + 8 * (j >> 2)) * 8192, 6 + (j & 3)
            else:
                srd, so, v = (16 if kind == "K" else 20), t * 16384 + (j >> 2) * 4096, 2 + (j & 3)
            e(f"  s_mov_b32 m0, {sbase + 1024 * j}")
            e(f"  s_mov_b32 s53, {so}")
            nt = " nt" if (kind != "W" and "nont" not in MODE) else ""
            e(f"  buffer_load_dwordx4 v{v}, s[{srd}:{srd + 3}], s53 offen{nt} lds")
    for n in range(PD):
        issue(n)
    for n in range(NT):
        last = min(n + PD - 1, NT - 1)
        e(f"  s_waitcnt vmcnt({16 * (last - n)})")
        e("  s_barrier")
        if n + PD < NT:
            issue(n + PD)
    e("  s_barrier")
    e("L_k1_end:")
    e("  s_endpgm")

def kernel2():
    DEPTH = 4
    ACC2 = 64
    BF = 128
    AF = 16
    e(".p2align 8")
    e("oproj_kernel:")
    e("  s_cmp_ge_u32 s2, 252")
    e("  s_cbranch_scc1 L_k2_end")
    e("  s_load_dwordx2 s[32:33], s[0:1], 32")
    e("  s_load_dwordx2 s[34:35], s[0:1], 72")
    e("  s_load_dwordx2 s[36:37], s[0:1], 80")
    e("  s_load_dwordx2 s[38:39], s[0:1], 96")
    e("  s_and_b32 s4, s2, 7")
    e("  s_lshr_b32 s5, s2, 3")
    e("  s_lshl_b32 s6, s4, 5")
    e("  s_mul_i32 s7, s4, 31")
    e("  s_add_u32 s7, s7, 4")
    e("  s_cmp_lt_u32 s4, 4")
    e("  s_cselect_b32 s6, s6, s7")
    e("  s_add_u32 s6, s6, s5")
    e("  s_cmp_ge_u32 s6, 126")
    e("  s_cselect_b32 s28, 1, 0")
    e("  s_mul_i32 s4, s28, 126")
    e("  s_sub_u32 s4, s6, s4")
    e("  s_mul_i32 s29, s4, 9363")
    e("  s_lshr_b32 s29, s29, 16")
    e("  s_mul_i32 s5, s29, 7")
    e("  s_sub_u32 s30, s4, s5")
    e("  v_lshrrev_b32 v1, 6, v0")
    e("  s_nop 0")
    e("  v_readfirstlane_b32 s3, v1")
    e("  v_and_b32 v1, 63, v0")
    e("  s_waitcnt lgkmcnt(0)")
    e("  s_cmp_eq_u32 s28, 0")
    e("  s_cselect_b32 s32, s32, s34")
    e("  s_cselect_b32 s33, s33, s35")
    e("  s_mov_b32 s8, s32")
    e("  s_and_b32 s9, s33, 0xffff")
    e(f"  s_mov_b32 s10, {4096 * 896}")
    e("  s_mov_b32 s11, 0x00020000")
    e("  s_mov_b32 s12, s38")
    e("  s_and_b32 s13, s39, 0xffff")
    e(f"  s_mov_b32 s14, {2 * 1152 * 8192}")
    e("  s_mov_b32 s15, 0x00020000")
    e("  s_mov_b32 s16, s36")
    e("  s_and_b32 s17, s37, 0xffff")
    e(f"  s_mov_b32 s18, {1152 * 1792}")
    e("  s_mov_b32 s19, 0x00020000")
    e("  s_lshl_b32 s50, s3, 14")
    e("  v_and_b32 v9, 15, v1")
    e("  v_lshrrev_b32 v10, 4, v1")
    e("  s_lshl_b32 s4, s28, 4")
    e("  s_lshl_b32 s5, s3, 1")
    e("  s_add_u32 s4, s4, s5")
    e("  s_mul_i32 s4, s4, 1152")
    e("  s_lshl_b32 s5, s29, 6")
    e("  s_add_u32 s4, s4, s5")
    e("  v_add_u32 v2, s4, v9")
    e("  v_lshlrev_b32 v2, 9, v2")
    e("  v_lshl_add_u32 v2, v10, 4, v2")
    e("  v_lshrrev_b32 v11, 3, v1")
    e("  v_bfe_u32 v12, v11, 1, 1")
    e("  v_lshlrev_b32 v12, 1, v12")
    e("  v_and_b32 v13, 7, v1")
    e("  v_xor_b32 v12, v12, v13")
    e("  v_lshlrev_b32 v12, 4, v12")
    e("  s_lshl_b32 s5, s3, 9")
    e("  v_add_u32 v11, s5, v11")
    e("  v_mul_u32_u24 v11, 896, v11")
    e("  v_add_u32 v3, v11, v12")
    e("  s_lshl_b32 s5, s30, 7")
    e("  v_add_u32 v3, s5, v3")
    e("  v_xor_b32 v14, 64, v3")
    e("  v_bfe_u32 v11, v1, 2, 2")
    e("  v_lshl_add_u32 v11, v10, 3, v11")
    e("  v_bfe_u32 v12, v1, 3, 1")
    e("  v_bfe_u32 v13, v1, 4, 1")
    e("  v_lshl_add_u32 v12, v13, 1, v12")
    e("  v_lshlrev_b32 v12, 1, v12")
    e("  v_bfe_u32 v13, v1, 1, 1")
    e("  v_or_b32 v12, v12, v13")
    e("  v_lshlrev_b32 v12, 4, v12")
    e("  v_lshl_add_u32 v4, v11, 7, v12")
    e("  v_and_b32 v13, 1, v1")
    e("  v_lshl_add_u32 v4, v13, 3, v4")
    e("  v_add_u32 v4, s50, v4")

    def loads(ks):
        sl = ks % DEPTH
        for j in range(4):
            e(f"  s_add_u32 m0, s50, {sl * 4096 + j * 1024}")
            e(f"  s_mov_b32 s53, {(32 * ks + 8 * j) * 896}")
            e(f"  buffer_load_dwordx4 v{3 if j % 2 == 0 else 14}, s[8:11], s53 offen lds")
        for mi in range(4):
            r = BF + 16 * sl + 4 * mi
            e(f"  s_mov_b32 s53, {mi * 16 * 512 + (ks >> 3) * 1152 * 512}")
            e(f"  buffer_load_dwordx4 v[{r}:{r + 3}], v2, s[12:15], s53 offen offset:{64 * (ks & 7)}")
    for ks in range(DEPTH):
        loads(ks)
    for ks in range(16):
        sl = ks % DEPTH
        after = min(ks + DEPTH - 1, 15) - ks
        e(f"  s_waitcnt vmcnt({8 * after})")
        for ni in range(4):
            e(f"  v_xor_b32 v{5 + ni}, {ni << 5}, v4")
            e(f"  ds_read_b64_tr_b16 v[{AF + 4 * ni}:{AF + 4 * ni + 1}], v{5 + ni} offset:{sl * 4096}")
            e(f"  ds_read_b64_tr_b16 v[{AF + 4 * ni + 2}:{AF + 4 * ni + 3}], v{5 + ni} offset:{sl * 4096 + 512}")
        for ni in range(4):
            e(f"  s_waitcnt lgkmcnt({2 * (3 - ni)})")
            for mi in range(4):
                d = ACC2 + 4 * (4 * ni + mi)
                c = "0" if ks == 0 else f"v[{d}:{d + 3}]"
                b = BF + 16 * sl + 4 * mi
                e(f"  v_mfma_f32_16x16x32_bf16 v[{d}:{d + 3}], v[{AF + 4 * ni}:{AF + 4 * ni + 3}], v[{b}:{b + 3}], {c}")
        if ks + DEPTH < 16:
            loads(ks + DEPTH)
    e("  s_nop 7")
    e("  s_nop 1")
    e("  v_lshlrev_b32 v5, 4, v1")
    e("  v_add_u32 v5, s50, v5")
    for t in range(16):
        d = ACC2 + 4 * t
        e(f"  ds_write_b128 v5, v[{d}:{d + 3}] offset:{1024 * t}")
    e("  s_waitcnt lgkmcnt(0)")
    e("  s_barrier")
    e("  v_lshlrev_b32 v5, 4, v1")
    e("  s_lshl_b32 s4, s3, 11")
    e("  v_add_u32 v5, s4, v5")
    e("  v_add_u32 v6, 0x10000, v5")
    for tt in range(2):
        for p in range(8):
            r = 16 + 4 * p + 32 * tt
            if p < 4:
                e(f"  ds_read_b128 v[{r}:{r + 3}], v5 offset:{16384 * p + 1024 * tt}")
            else:
                e(f"  ds_read_b128 v[{r}:{r + 3}], v6 offset:{16384 * (p - 4) + 1024 * tt}")
    e("  s_waitcnt lgkmcnt(0)")
    for tt in range(2):
        b0 = 16 + 32 * tt
        for p in range(1, 8):
            for r in range(4):
                e(f"  v_add_f32 v{b0 + r}, v{b0 + r}, v{b0 + 4 * p + r}")
    e("  s_and_b32 s4, s3, 1")
    e("  s_lshl_b32 s4, s4, 5")
    e("  s_lshl_b32 s5, s29, 6")
    e("  s_add_u32 s4, s4, s5")
    e("  v_add_u32 v9, s4, v9")
    e("  v_mul_u32_u24 v9, 1792, v9")
    e("  v_lshl_add_u32 v9, v10, 3, v9")
    e("  s_mul_i32 s4, s28, 896")
    e("  s_lshl_b32 s5, s30, 7")
    e("  s_add_u32 s4, s4, s5")
    e("  s_lshr_b32 s5, s3, 1")
    e("  s_lshl_b32 s5, s5, 5")
    e("  s_add_u32 s4, s4, s5")
    e("  v_add_u32 v9, s4, v9")
    for tt in range(2):
        b0 = 16 + 32 * tt
        e(f"  v_cvt_pk_bf16_f32 v{b0}, v{b0}, v{b0 + 1}")
        e(f"  v_cvt_pk_bf16_f32 v{b0 + 1}, v{b0 + 2}, v{b0 + 3}")
        e(f"  s_mov_b32 s53, {tt * 16 * 1792}")
        e(f"  buffer_store_dwordx2 v[{b0}:{b0 + 1}], v9, s[16:19], s53 offen")
    e("L_k2_end:")
    e("  s_endpgm")

def main():
    hdr = open(f"cdna_kernels/{NAME}.s.ref").read().splitlines()
    for line in hdr:
        if line.startswith("; @launch"):
            break
        if "@launch" in line:
            continue
        e(line)
    e(f"; @launch kernel=attn_kernel grid=(256,1,1) block=(256,1,1) lds={NSLOT * SLOT}")
    e("; @launch kernel=oproj_kernel grid=(252,1,1) block=(512,1,1) lds=131072")
    e('.amdgcn_target "amdgcn-amd-amdhsa--gfx950"')
    e(".text")
    e(".globl attn_kernel")
    e(".p2align 8")
    e(".type attn_kernel,@function")
    kernel1()
    e(".globl oproj_kernel")
    e(".type oproj_kernel,@function")
    kernel2()
    e('.section .rodata,"a"')
    for name, nv, ao in (("attn_kernel", 480, 256), ("oproj_kernel", 192, 192)):
        e(".p2align 6")
        e(f".amdhsa_kernel {name}")
        e(f"  .amdhsa_next_free_vgpr {nv}")
        e("  .amdhsa_next_free_sgpr 100")
        e(f"  .amdhsa_accum_offset {ao}")
        e("  .amdhsa_group_segment_fixed_size 0")
        e("  .amdhsa_kernarg_size 104")
        e("  .amdhsa_user_sgpr_count 2")
        e("  .amdhsa_user_sgpr_kernarg_segment_ptr 1")
        e("  .amdhsa_system_sgpr_workgroup_id_x 1")
        e(".end_amdhsa_kernel")
    open(OUT, "w").write("\n".join(x for x in L if x is not None) + "\n")

main()
```

```python
import sys, os
MODE = os.environ.get("MODE", "")

NAME = "concat_heads__mha_block_cached__gqa_block_cached__near_ridge"
OUT = os.environ.get("OUT", f"cdna_kernels/{NAME}.s")

L = []
def e(s=""):
    L.append(s)

_lab = [0]
def newlabel(p="L"):
    _lab[0] += 1
    return f"{p}_{_lab[0]}"

NSLOT = int(os.environ.get("NSLOT", "10"))
SLOT = 16384
PD = NSLOT - 2
CP = int(os.environ.get("CP", "3"))
LOOK = int(os.environ.get("LOOK", "7"))
FBA = 192
QR = 32
SR = 128
PR = 224
VM = 10
VL = 13
VX = 16
VT = 19
def xreg(rt, ks):
    return 32 + 56 * rt + 4 * ks

TILES = [("W", m) for m in range(14)]
TILES += [("K", 0), ("K", 1)]
for c in range(8):
    if c < 7:
        TILES += [("K", 2 * c + 2), ("K", 2 * c + 3)]
    TILES += [("V", 2 * c), ("V", 2 * c + 1)]
NT = len(TILES)
assert NT == 46

def softmax_fillers(c, rare_blocks):
    F = []
    sb = SR + 48 * (c & 1)
    for rt in range(3):
        S = [sb + 16 * rt + i for i in range(16)]
        t = VT + 3 * rt
        x = VX + rt
        F += [f"v_max3_f32 v{t}, v{S[0]}, v{S[1]}, v{S[2]}",
              f"v_max3_f32 v{t+1}, v{S[3]}, v{S[4]}, v{S[5]}",
              f"v_max3_f32 v{t+2}, v{S[6]}, v{S[7]}, v{S[8]}",
              f"v_max3_f32 v{t}, v{t}, v{S[9]}, v{S[10]}",
              f"v_max3_f32 v{t+1}, v{t+1}, v{S[11]}, v{S[12]}",
              f"v_max3_f32 v{t+2}, v{t+2}, v{S[13]}, v{S[14]}",
              f"v_max3_f32 v{t}, v{t}, v{t+1}, v{S[15]}",
              f"v_max_f32 v{x}, v{t}, v{t+2}",
              f"v_mov_b32 v{t}, v{x}",
              "s_nop 1",
              f"v_permlane32_swap_b32 v{x}, v{t}",
              f"v_max_f32 v{x}, v{x}, v{t}",
              f"v_mov_b32 v{t}, v{x}",
              "s_nop 1",
              f"v_permlane16_swap_b32 v{x}, v{t}",
              f"v_max_f32 v{x}, v{x}, v{t}",
              f"v_mul_f32 v{x}, s51, v{x}"]
    if c == 0:
        for rt in range(3):
            F += [f"v_mov_b32 v{VM+rt}, v{VX+rt}"]
    else:
        lr = f"Lrare_{c}"
        F += [f"v_sub_f32 v{VT}, v{VX}, v{VM}",
              f"v_sub_f32 v{VT+1}, v{VX+1}, v{VM+1}",
              f"v_sub_f32 v{VT+2}, v{VX+2}, v{VM+2}",
              f"v_max3_f32 v{VT}, v{VT}, v{VT+1}, v{VT+2}",
              f"v_cmp_lt_f32 vcc, s52, v{VT}",
              f"s_cbranch_vccnz {lr}\n{lr}_ret:"]
        rare_blocks.append(lr)
    for rt in range(3):
        S = [sb + 16 * rt + i for i in range(16)]
        for i in range(16):
            F.append(f"v_fma_f32 v{S[i]}, v{S[i]}, s51, -v{VM+rt}")
        for i in range(16):
            F.append(f"v_exp_f32 v{S[i]}, v{S[i]}")
    for rt in range(3):
        S = [sb + 16 * rt + i for i in range(16)]
        t = VT + 3 * rt
        F += [f"v_add_f32 v{t}, v{S[0]}, v{S[1]}",
              f"v_add_f32 v{t+1}, v{S[2]}, v{S[3]}"]
        for i in range(4, 16, 2):
            F += [f"v_add_f32 v{t}, v{t}, v{S[i]}",
                  f"v_add_f32 v{t+1}, v{t+1}, v{S[i+1]}"]
        F += [f"v_add_f32 v{t}, v{t}, v{t+1}"]
        if c == 0:
            F += [f"v_mov_b32 v{VL+rt}, v{t}"]
        else:
            F += [f"v_add_f32 v{VL+rt}, v{VL+rt}, v{t}"]
    for rt in range(3):
        S = [sb + 16 * rt + i for i in range(16)]
        for j in range(2):
            for q in range(4):
                F.append(f"v_cvt_pk_bf16_f32 v{PR + 8*rt + 4*j + q}, v{S[8*j + 2*q]}, v{S[8*j + 2*q + 1]}")
    return F

def rare_block(lr):
    e(f"{lr}:")
    for rt in range(3):
        t = VT + 3 * rt
        e(f"  v_max_f32 v{t}, v{VM+rt}, v{VX+rt}")
        e(f"  v_sub_f32 v{t+1}, v{VM+rt}, v{t}")
        e(f"  v_exp_f32 v{t+1}, v{t+1}")
        e(f"  v_mov_b32 v{VM+rt}, v{t}")
        e(f"  v_mul_f32 v{VL+rt}, v{VL+rt}, v{t+1}")
        for i in range(64):
            a = 64 * rt + i
            e(f"  v_accvgpr_read_b32 v{t+2}, a{a}")
            e(f"  v_mul_f32 v{t+2}, v{t+2}, v{t+1}")
            e(f"  v_accvgpr_write_b32 a{a}, v{t+2}")
    e("  s_nop 1")
    e(f"  s_branch {lr}_ret")

XB = 32768
def xpieces():
    e("  v_lshlrev_b32 v28, 4, v1")
    e("  s_lshl_b32 s5, s3, 10")
    for p in range(32):
        lab = None
        if p == 31:
            lab = newlabel("Lxs")
            e("  s_cmp_ge_u32 s3, 2")
            e(f"  s_cbranch_scc1 {lab}")
        e(f"  s_add_u32 m0, s5, {XB + 4096 * p}")
        e(f"  s_add_u32 s53, s5, {4096 * p}")
        e(f"  buffer_load_dwordx4 v28, s[8:11], s53 offen lds")
        if lab:
            e(f"{lab}:")

def kernel1():
    e(f"attn_kernel:")
    e("  s_cmp_ge_u32 s2, 256")
    e("  s_cbranch_scc1 L_k1_end")
    if "stamp" in MODE:
        e("  s_memrealtime s[96:97]")
    e("  s_load_dwordx8 s[32:39], s[0:1], 0")
    e("  s_load_dwordx8 s[40:47], s[0:1], 40")
    e("  s_load_dwordx2 s[48:49], s[0:1], 96")
    e("  s_lshr_b32 s28, s2, 7")
    e("  s_lshr_b32 s29, s2, 4")
    e("  s_and_b32 s29, s29, 7")
    e("  s_and_b32 s30, s2, 15")
    e("  v_lshrrev_b32 v1, 6, v0")
    e("  s_nop 0")
    e("  v_readfirstlane_b32 s3, v1")
    e("  v_and_b32 v1, 63, v0")
    e("  s_waitcnt lgkmcnt(0)")
    e("  s_cmp_eq_u32 s28, 0")
    for i in range(8):
        e(f"  s_cselect_b32 s{32 + i}, s{32 + i}, s{40 + i}")
    e("  s_mul_i32 s4, s29, 129024")
    e("  s_add_u32 s8, s32, s4")
    e("  s_addc_u32 s9, s33, 0")
    e("  s_and_b32 s9, s9, 0xffff")
    e("  s_mov_b32 s10, 129024")
    e("  s_mov_b32 s11, 0x00020000")
    e("  s_lshl_b32 s4, s30, 9")
    e("  s_add_u32 s12, s38, s4")
    e("  s_addc_u32 s13, s39, 0")
    e("  s_and_b32 s13, s13, 0xffff")
    e(f"  s_sub_u32 s14, {448 * 8192}, s4")
    e("  s_mov_b32 s15, 0x00020000")
    e("  s_lshl_b32 s4, s29, 4")
    e("  s_add_u32 s4, s4, s30")
    e("  s_lshr_b32 s5, s4, 14")
    e("  s_lshl_b32 s4, s4, 18")
    e("  s_add_u32 s16, s34, s4")
    e("  s_addc_u32 s17, s35, s5")
    e("  s_and_b32 s17, s17, 0xffff")
    e("  s_mov_b32 s18, 262144")
    e("  s_mov_b32 s19, 0x00020000")
    e("  s_add_u32 s20, s36, s4")
    e("  s_addc_u32 s21, s37, s5")
    e("  s_and_b32 s21, s21, 0xffff")
    e("  s_mov_b32 s22, 262144")
    e("  s_mov_b32 s23, 0x00020000")
    e("  s_mov_b32 s24, s48")
    e("  s_and_b32 s25, s49, 0xffff")
    e(f"  s_mov_b32 s26, {2 * 1152 * 8192}")
    e("  s_mov_b32 s27, 0x00020000")
    e("  s_mov_b32 s51, 0x3db8aa3b")
    e("  s_mov_b32 s52, 0x41000000")
    e("  s_cmp_eq_u32 s3, 3")
    e("  s_cbranch_scc1 L_loader")
    e("  v_and_b32 v6, 15, v1")
    e("  v_lshrrev_b32 v7, 4, v1")
    e("  v_and_b32 v9, 7, v6")
    e("  v_lshlrev_b32 v9, 1, v9")
    e("  v_xor_b32 v9, v9, v7")
    e("  v_lshlrev_b32 v9, 4, v9")
    e("  v_lshl_add_u32 v2, v6, 9, v9")
    e("  v_lshrrev_b32 v8, 2, v1")
    e("  v_and_b32 v9, 7, v8")
    e("  v_lshlrev_b32 v9, 1, v9")
    e("  v_bfe_u32 v6, v1, 1, 1")
    e("  v_xor_b32 v6, v6, v9")
    e("  v_lshlrev_b32 v6, 4, v6")
    e("  v_lshl_add_u32 v3, v8, 9, v6")
    e("  v_and_b32 v6, 1, v1")
    e("  v_lshl_add_u32 v3, v6, 3, v3")
    e("  v_and_b32 v6, 3, v1")
    e("  v_xor_b32 v6, v6, v9")
    e("  v_lshlrev_b32 v6, 4, v6")
    e("  v_lshl_add_u32 v4, v8, 9, v6")

    e(f"  s_mul_i32 s6, s3, {CP}")
    e(f"  s_lshl_b32 s50, s6, 10")
    e("  s_lshl_b32 s6, s6, 1")
    e("  v_lshrrev_b32 v8, 5, v1")
    e("  v_add_u32 v8, s6, v8")
    e("  v_and_b32 v9, 31, v1")
    for i in range(CP):
        e(f"  v_add_u32 v6, {2 * i}, v8")
        e(f"  v_and_b32 v7, 7, v6")
        e(f"  v_lshlrev_b32 v7, 1, v7")
        e(f"  v_xor_b32 v7, v7, v9")
        e(f"  v_lshlrev_b32 v7, 4, v7")
        e(f"  v_lshl_add_u32 v{248 + i}, v6, 9, v7")
        e(f"  v_lshl_add_u32 v{248 + CP + i}, v6, 13, v7")
    def cpieces(n):
        kind, t = TILES[n]
        sbase = (n % NSLOT) * SLOT
        out = []
        if "nodma" in MODE and kind != "W" and n >= 20:
            return out
        for i in range(CP):
            if kind == "W":
                srd, so, v, nt = 12, 32 * t * 8192, 248 + CP + i, ""
            else:
                srd, so, v, nt = (16 if kind == "K" else 20), t * 16384, 248 + i, " nt"
            out += [f"s_add_u32 m0, s50, {sbase + 1024 * i}", f"s_mov_b32 s53, {so}",
                    f"buffer_load_dwordx4 v{v}, s[{srd}:{srd + 3}], s53 offen{nt} lds"]
        return out
    xpieces()
    for n in range(2):
        for x in cpieces(n):
            e("  " + x)
    e(f"  s_waitcnt vmcnt({2 * CP})")
    e("  s_barrier")
    e("  v_and_b32 v6, 15, v1")
    e("  v_lshrrev_b32 v7, 4, v1")
    e("  s_mul_i32 s5, s3, 48")
    e("  v_add_u32 v8, s5, v6")
    e("  v_mul_u32_u24 v8, 896, v8")
    e("  v_lshl_add_u32 v8, v7, 3, v8")
    e(f"  v_add_u32 v8, {XB}, v8")
    cnt = 0
    for rt in range(3):
        for ks in range(14):
            r = xreg(rt, ks)
            e(f"  ds_read_b64 v[{r}:{r + 1}], v8 offset:{rt * 16 * 896 + 64 * ks}")
            e(f"  ds_read_b64 v[{r + 2}:{r + 3}], v8 offset:{rt * 16 * 896 + 64 * ks + 32}")
            cnt += 2
            if cnt % 14 == 0:
                e("  s_waitcnt lgkmcnt(6)")
    e("  s_waitcnt lgkmcnt(0)")
    e("  s_barrier")
    for n in range(2, PD):
        for x in cpieces(n):
            e("  " + x)
    frags = []
    atmp = [6, 7, 8, 9]
    ac = [0]
    def nexta():
        ac[0] += 1
        return atmp[ac[0] % 4]
    for n, (kind, t) in enumerate(TILES):
        sbase = (n % NSLOT) * SLOT
        for f in range(16):
            fr = dict(pre=[], reads=[], mf=[], post=[], phase=n)
            if f == 0:
                last = min(n + PD - 1, NT - 1)
                fr["pre"].append(f"s_waitcnt vmcnt({CP * (last - n)})")
                fr["pre"].append("s_barrier")
                if n + PD < NT:
                    fr["pre"] += cpieces(n + PD)
                a0 = {"W": 4, "K": 2, "V": 3}[kind]
                fr["pre"].append(f"v_add_u32 v5, {sbase}, v{a0}")
            if kind == "W":
                s, hb = f >> 1, f & 1
                if hb == 0:
                    a = nexta(); cur = a
                    fr["pre"].append(f"v_xor_b32 v{a}, {(s & 3) << 6}, v5")
                a = cur
                off = 256 * (s >> 2) + 8 * hb
                fr["reads"] = [f"ds_read_b64_tr_b16 a[{{fb}}:{{fb1}}], v{a} offset:{off}",
                               f"ds_read_b64_tr_b16 a[{{fb2}}:{{fb3}}], v{a} offset:{off + 8192}"]
                for rt in range(3):
                    d = 64 * rt + 4 * f
                    c = "0" if t == 0 else f"a[{d}:{d + 3}]"
                    b = xreg(rt, t)
                    fr["mf"].append(f"v_mfma_f32_16x16x32_bf16 a[{d}:{d + 3}], a[{{fb}}:{{fb3}}], v[{b}:{b + 3}], {c}")
            elif kind == "V":
                a = nexta()
                fr["pre"].append(f"v_xor_b32 v{a}, {(f & 7) << 5}, v5")
                off = 256 * (f >> 3)
                fr["reads"] = [f"ds_read_b64_tr_b16 a[{{fb}}:{{fb1}}], v{a} offset:{off}",
                               f"ds_read_b64_tr_b16 a[{{fb2}}:{{fb3}}], v{a} offset:{off + 8192}"]
                for rt in range(3):
                    d = 64 * rt + 4 * f
                    c = "0" if t == 0 else f"a[{d}:{d + 3}]"
                    b = PR + 8 * rt + 4 * (t & 1)
                    fr["mf"].append(f"v_mfma_f32_16x16x32_bf16 a[{d}:{d + 3}], a[{{fb}}:{{fb3}}], v[{b}:{b + 3}], {c}")
            else:
                s, tl = f >> 1, f & 1
                if tl == 0:
                    a = nexta(); cur = a
                    fr["pre"].append(f"v_xor_b32 v{a}, {(s & 3) << 6}, v5")
                a = cur
                off = 256 * (s >> 2) + 8192 * tl
                fr["reads"] = [f"ds_read_b128 a[{{fb}}:{{fb3}}], v{a} offset:{off}"]
                ch = t >> 1
                for rt in range(3):
                    d = SR + 48 * (ch & 1) + 16 * rt + 4 * (2 * (t & 1) + tl)
                    c = "0" if s == 0 else f"v[{d}:{d + 3}]"
                    q = QR + 32 * rt + 4 * s
                    fr["mf"].append(f"v_mfma_f32_16x16x32_bf16 v[{d}:{d + 3}], a[{{fb}}:{{fb3}}], v[{q}:{q + 3}], {c}")
            frags.append(fr)
    N = len(frags)
    post = ["s_nop 7", "s_nop 1"]
    for rt in range(3):
        for s in range(8):
            for q in range(4):
                a = 64 * rt + 8 * s + 2 * q
                post += [f"v_accvgpr_read_b32 v{VT}, a{a}", f"v_accvgpr_read_b32 v{VT+1}, a{a+1}",
                         f"v_cvt_pk_bf16_f32 v{QR + 32*rt + 4*s + q}, v{VT}, v{VT+1}"]
    post += ["s_nop 1"]
    frags[14 * 16 - 1]["post"] = post
    rare = []
    fillers = {}
    tidx = {tk: n for n, tk in enumerate(TILES)}
    for c in range(8):
        F = softmax_fillers(c, rare)
        if c < 7:
            p0 = tidx[("K", 2 * c + 2)]
            h = len(F) // 2
            fillers[p0] = F[:h]
            fillers[p0 + 1] = F[h:]
        else:
            frags[(tidx[("V", 13)] + 1) * 16 - 1]["post"] = ["s_nop 7"] + F + ["s_nop 1"]

    def fmt(s, i):
        fb = FBA + 4 * (i % 8)
        return s.format(fb=fb, fb1=fb + 1, fb2=fb + 2, fb3=fb + 3)
    stamps = []
    def stamp():
        if "stamp" not in MODE:
            return
        k = len(stamps)
        stamps.append(k)
        e("  s_memtime s[60:61]")
        e("  s_waitcnt lgkmcnt(0)")
        e(f"  s_mov_b32 s{64 + k}, s60")
        if k == 0:
            e("  s_memrealtime s[60:61]")
            e("  s_waitcnt lgkmcnt(0)")
            e(f"  s_mov_b32 s98, s60")
    def issue_reads(i):
        if i % 32 == 0 or i == 14 * 16:
            stamp()
        for x in frags[i]["pre"]:
            e("  " + x)
        for x in frags[i]["reads"]:
            e("  " + fmt(x, i))
    stamp()

    for i in range(LOOK):
        issue_reads(i)
    for i in range(N):
        out = sum(len(frags[k]["reads"]) for k in range(i + 1, min(i + LOOK, N)))
        e(f"  s_waitcnt lgkmcnt({out})")
        ph = frags[i]["phase"]
        F = fillers.get(ph, [])
        fi = i % 16
        side = []
        if i + LOOK < N:
            j = i + LOOK
            if "stamp" in MODE and (j % 32 == 0 or j == 14 * 16):
                side.append("@stamp")
            side += list(frags[j]["pre"]) + [fmt(x, j) for x in frags[j]["reads"]]
        ns = len(side)
        for mi, m in enumerate(frags[i]["mf"]):
            if "nocompute" not in MODE:
                e("  " + fmt(m, i))
            for x in side[mi * ns // 3:(mi + 1) * ns // 3]:
                if x == "@stamp":
                    stamp()
                else:
                    e("  " + x)
            k = fi * 3 + mi
            if F and k >= 3:
                lo = (k - 3) * len(F) // 45
                hi = (k - 2) * len(F) // 45
                for x in F[lo:hi]:
                    e("  " + x)
        for x in frags[i]["post"]:
            e("  " + x)
    e("  s_nop 7")
    e("  s_nop 1")
    for rt in range(3):
        l = VL + rt
        e(f"  v_mov_b32 v{VT}, v{l}")
        e("  s_nop 1")
        e(f"  v_permlane32_swap_b32 v{l}, v{VT}")
        e(f"  v_add_f32 v{l}, v{l}, v{VT}")
        e(f"  v_mov_b32 v{VT}, v{l}")
        e("  s_nop 1")
        e(f"  v_permlane16_swap_b32 v{l}, v{VT}")
        e(f"  v_add_f32 v{l}, v{l}, v{VT}")
        e(f"  v_rcp_f32 v{l}, v{l}")
    e("  s_barrier")
    e("  s_mul_i32 s4, s3, 25344")
    e("  v_and_b32 v9, 15, v1")
    e("  v_mul_u32_u24 v9, 528, v9")
    e("  v_lshrrev_b32 v8, 4, v1")
    e("  v_lshl_add_u32 v9, v8, 3, v9")
    e("  v_add_u32 v9, s4, v9")
    k = 0
    for rt in range(3):
        for t in range(16):
            a = 64 * rt + 4 * t
            tb = 128 + 8 * (k % 8); k += 1
            for r in range(4):
                e(f"  v_accvgpr_read_b32 v{tb + r}, a{a + r}")
            for r in range(4):
                e(f"  v_mul_f32 v{tb + r}, v{VL + rt}, v{tb + r}")
            e(f"  v_cvt_pk_bf16_f32 v{tb + 4}, v{tb}, v{tb + 1}")
            e(f"  v_cvt_pk_bf16_f32 v{tb + 5}, v{tb + 2}, v{tb + 3}")
            e(f"  ds_write_b64 v9, v[{tb + 4}:{tb + 5}] offset:{rt * 16 * 528 + 32 * t}")
    e("  v_lshrrev_b32 v8, 5, v1")
    e("  v_and_b32 v7, 31, v1")
    e("  v_mul_u32_u24 v9, 528, v8")
    e("  v_lshl_add_u32 v9, v7, 4, v9")
    e("  v_add_u32 v9, s4, v9")
    e("  s_lshl_b32 s4, s28, 4")
    e("  s_add_u32 s4, s4, s30")
    e("  s_mul_i32 s4, s4, 1152")
    e("  s_mul_i32 s5, s29, 144")
    e("  s_add_u32 s4, s4, s5")
    e("  s_mul_i32 s5, s3, 48")
    e("  s_add_u32 s4, s4, s5")
    e("  s_lshl_b32 s4, s4, 9")
    e("  v_lshlrev_b32 v8, 9, v8")
    e("  v_lshl_add_u32 v8, v7, 4, v8")
    e("  s_waitcnt lgkmcnt(0)")
    for hh in range(2):
        for i in range(12 * hh, 12 * hh + 12):
            e(f"  ds_read_b128 v[{32 + 4 * i}:{35 + 4 * i}], v9 offset:{2 * i * 528}")
        for i in range(12 * hh, 12 * hh + 12):
            e(f"  s_waitcnt lgkmcnt({12 * hh + 11 - i})")
            e(f"  s_add_u32 s5, s4, {1024 * i}")
            e(f"  buffer_store_dwordx4 v[{32 + 4 * i}:{35 + 4 * i}], v8, s[24:27], s5 offen")
    if "stamp" in MODE:
        stamp()
        e("  s_memrealtime s[60:61]")
        e("  s_waitcnt lgkmcnt(0)")
        e("  s_sub_u32 s60, s60, s98")
        e(f"  s_add_u32 s{64 + len(stamps)}, s60, s64")
        stamps.append(len(stamps))
        e("  s_memrealtime s[60:61]")
        e("  s_waitcnt lgkmcnt(0)")
        e(f"  s_mov_b32 s{64 + len(stamps)}, s96")
        stamps.append(len(stamps))
        e(f"  s_mov_b32 s{64 + len(stamps)}, s98")
        stamps.append(len(stamps))
        e(f"  s_mov_b32 s{64 + len(stamps)}, s60")
        stamps.append(len(stamps))
        e("  s_lshl_b32 s4, s2, 2")
        e("  s_add_u32 s4, s4, s3")
        e("  s_lshl_b32 s4, s4, 8")
        e(f"  s_add_u32 s4, s4, {2 * 1152 * 8192}")
        e(f"  s_mov_b32 s26, {2 * 1152 * 8192 + 1024 * 256}")
        for k in stamps:
            e(f"  v_mov_b32 v20, s{64 + k}")
            e(f"  v_mov_b32 v21, 0")
            e(f"  buffer_store_dword v20, v21, s[24:27], s4 offen offset:{4 * k}")
    e("  s_endpgm")
    for lr in rare:
        rare_block(lr)
    e("L_loader:")
    e("  v_lshrrev_b32 v10, 5, v1")
    e("  v_and_b32 v11, 31, v1")
    for j in range(4):
        e(f"  v_add_u32 v12, {2 * j}, v10")
        e(f"  v_lshlrev_b32 v13, 1, v12")
        if "noswz" in MODE:
            e(f"  v_mov_b32 v13, v11")
        else:
            e(f"  v_xor_b32 v13, v13, v11")
        e(f"  v_lshlrev_b32 v13, 4, v13")
        e(f"  v_lshl_add_u32 v{2 + j}, v12, 9, v13")
        e(f"  v_lshl_add_u32 v{6 + j}, v12, 13, v13")
    def issue(n):
        kind, t = TILES[n]
        sbase = (n % NSLOT) * SLOT
        if "nodma" in MODE and kind != "W" and n >= 20:
            return
        for j in range(3 * CP, 16):
            if kind == "W":
                srd, so, v = 12, (32 * t + 8 * (j >> 2)) * 8192, 6 + (j & 3)
            else:
                srd, so, v = (16 if kind == "K" else 20), t * 16384 + (j >> 2) * 4096, 2 + (j & 3)
            e(f"  s_mov_b32 m0, {sbase + 1024 * j}")
            e(f"  s_mov_b32 s53, {so}")
            nt = " nt" if (kind != "W" and "nont" not in MODE) else ""
            e(f"  buffer_load_dwordx4 v{v}, s[{srd}:{srd + 3}], s53 offen{nt} lds")
    xpieces()
    for n in range(2):
        issue(n)
    e(f"  s_waitcnt vmcnt({2 * (16 - 3 * CP)})")
    e("  s_barrier")
    e("  s_barrier")
    for n in range(2, PD):
        issue(n)
    for n in range(NT):
        last = min(n + PD - 1, NT - 1)
        e(f"  s_waitcnt vmcnt({min((16 - 3 * CP) * (last - n), 56)})")
        e("  s_barrier")
        if n + PD < NT:
            issue(n + PD)
    e("  s_barrier")
    e("L_k1_end:")
    e("  s_endpgm")

def kernel2():
    DEPTH = 4
    ACC2 = 64
    BF = 128
    AF = 16
    e(".p2align 8")
    e("oproj_kernel:")
    e("  s_cmp_ge_u32 s2, 252")
    e("  s_cbranch_scc1 L_k2_end")
    e("  s_load_dwordx2 s[32:33], s[0:1], 32")
    e("  s_load_dwordx2 s[34:35], s[0:1], 72")
    e("  s_load_dwordx2 s[36:37], s[0:1], 80")
    e("  s_load_dwordx2 s[38:39], s[0:1], 96")
    e("  s_and_b32 s4, s2, 7")
    e("  s_lshr_b32 s5, s2, 3")
    e("  s_lshl_b32 s6, s4, 5")
    e("  s_mul_i32 s7, s4, 31")
    e("  s_add_u32 s7, s7, 4")
    e("  s_cmp_lt_u32 s4, 4")
    e("  s_cselect_b32 s6, s6, s7")
    e("  s_add_u32 s6, s6, s5")
    e("  s_cmp_ge_u32 s6, 126")
    e("  s_cselect_b32 s28, 1, 0")
    e("  s_mul_i32 s4, s28, 126")
    e("  s_sub_u32 s4, s6, s4")
    e("  s_mul_i32 s29, s4, 9363")
    e("  s_lshr_b32 s29, s29, 16")
    e("  s_mul_i32 s5, s29, 7")
    e("  s_sub_u32 s30, s4, s5")
    e("  v_lshrrev_b32 v1, 6, v0")
    e("  s_nop 0")
    e("  v_readfirstlane_b32 s3, v1")
    e("  v_and_b32 v1, 63, v0")
    e("  s_waitcnt lgkmcnt(0)")
    e("  s_cmp_eq_u32 s28, 0")
    e("  s_cselect_b32 s32, s32, s34")
    e("  s_cselect_b32 s33, s33, s35")
    e("  s_mov_b32 s8, s32")
    e("  s_and_b32 s9, s33, 0xffff")
    e(f"  s_mov_b32 s10, {4096 * 896}")
    e("  s_mov_b32 s11, 0x00020000")
    e("  s_mov_b32 s12, s38")
    e("  s_and_b32 s13, s39, 0xffff")
    e(f"  s_mov_b32 s14, {2 * 1152 * 8192}")
    e("  s_mov_b32 s15, 0x00020000")
    e("  s_mov_b32 s16, s36")
    e("  s_and_b32 s17, s37, 0xffff")
    e(f"  s_mov_b32 s18, {1152 * 1792}")
    e("  s_mov_b32 s19, 0x00020000")
    e("  s_lshl_b32 s50, s3, 14")
    e("  v_and_b32 v9, 15, v1")
    e("  v_lshrrev_b32 v10, 4, v1")
    e("  s_lshl_b32 s4, s28, 4")
    e("  s_lshl_b32 s5, s3, 1")
    e("  s_add_u32 s4, s4, s5")
    e("  s_mul_i32 s4, s4, 1152")
    e("  s_lshl_b32 s5, s29, 6")
    e("  s_add_u32 s4, s4, s5")
    e("  v_add_u32 v2, s4, v9")
    e("  v_lshlrev_b32 v2, 9, v2")
    e("  v_lshl_add_u32 v2, v10, 4, v2")
    e("  v_lshrrev_b32 v11, 3, v1")
    e("  v_bfe_u32 v12, v11, 1, 1")
    e("  v_lshlrev_b32 v12, 1, v12")
    e("  v_and_b32 v13, 7, v1")
    e("  v_xor_b32 v12, v12, v13")
    e("  v_lshlrev_b32 v12, 4, v12")
    e("  s_lshl_b32 s5, s3, 9")
    e("  v_add_u32 v11, s5, v11")
    e("  v_mul_u32_u24 v11, 896, v11")
    e("  v_add_u32 v3, v11, v12")
    e("  s_lshl_b32 s5, s30, 7")
    e("  v_add_u32 v3, s5, v3")
    e("  v_xor_b32 v14, 64, v3")
    e("  v_bfe_u32 v11, v1, 2, 2")
    e("  v_lshl_add_u32 v11, v10, 3, v11")
    e("  v_bfe_u32 v12, v1, 3, 1")
    e("  v_bfe_u32 v13, v1, 4, 1")
    e("  v_lshl_add_u32 v12, v13, 1, v12")
    e("  v_lshlrev_b32 v12, 1, v12")
    e("  v_bfe_u32 v13, v1, 1, 1")
    e("  v_or_b32 v12, v12, v13")
    e("  v_lshlrev_b32 v12, 4, v12")
    e("  v_lshl_add_u32 v4, v11, 7, v12")
    e("  v_and_b32 v13, 1, v1")
    e("  v_lshl_add_u32 v4, v13, 3, v4")
    e("  v_add_u32 v4, s50, v4")

    NOPS = 8 - (4 if "k2skipw" in MODE else 0) - (4 if "k2skipo" in MODE else 0)
    def loads(ks):
        sl = ks % DEPTH
        for j in range(0 if "k2skipw" in MODE else 4):
            e(f"  s_add_u32 m0, s50, {sl * 4096 + j * 1024}")
            e(f"  s_mov_b32 s53, {(32 * ks + 8 * j) * 896}")
            if "k2now" in MODE:
                e(f"  s_mov_b32 s53, 0")
            e(f"  buffer_load_dwordx4 v{3 if j % 2 == 0 else 14}, s[8:11], s53 offen{' nt' if 'k2ntw' in MODE else ''} lds")
        for mi in range(0 if "k2skipo" in MODE else 4):
            r = BF + 16 * sl + 4 * mi
            e(f"  s_mov_b32 s53, {mi * 16 * 512 + (ks >> 3) * 1152 * 512}")
            if "k2noo" in MODE:
                e(f"  s_mov_b32 s53, 0")
                e(f"  buffer_load_dwordx4 v[{r}:{r + 3}], v2, s[12:15], s53 offen")
            else:
                e(f"  buffer_load_dwordx4 v[{r}:{r + 3}], v2, s[12:15], s53 offen offset:{64 * (ks & 7)}{' nt' if 'k2nto' in MODE else ''}")
    st2 = []
    def stamp2():
        if "k2stamp" not in MODE:
            return
        k = len(st2); st2.append(k)
        e("  s_memtime s[60:61]")
        e("  s_waitcnt lgkmcnt(0)")
        e(f"  s_mov_b32 s{64 + k}, s60")
    stamp2()
    for ks in range(DEPTH):
        loads(ks)
    for ks in range(16):
        sl = ks % DEPTH
        after = min(ks + DEPTH - 1, 15) - ks
        e(f"  s_waitcnt vmcnt({NOPS * after})")
        stamp2()
        for ni in range(4):
            e(f"  v_xor_b32 v{5 + ni}, {ni << 5}, v4")
            e(f"  ds_read_b64_tr_b16 v[{AF + 4 * ni}:{AF + 4 * ni + 1}], v{5 + ni} offset:{sl * 4096}")
            e(f"  ds_read_b64_tr_b16 v[{AF + 4 * ni + 2}:{AF + 4 * ni + 3}], v{5 + ni} offset:{sl * 4096 + 512}")
        for ni in range(4):
            e(f"  s_waitcnt lgkmcnt({2 * (3 - ni)})")
            for mi in range(4):
                d = ACC2 + 4 * (4 * ni + mi)
                c = "0" if ks == 0 else f"v[{d}:{d + 3}]"
                b = BF + 16 * sl + 4 * mi
                e(f"  v_mfma_f32_16x16x32_bf16 v[{d}:{d + 3}], v[{AF + 4 * ni}:{AF + 4 * ni + 3}], v[{b}:{b + 3}], {c}")
        if ks + DEPTH < 16:
            loads(ks + DEPTH)
    e("  s_nop 7")
    e("  s_nop 1")
    e("  v_lshlrev_b32 v5, 4, v1")
    e("  v_add_u32 v5, s50, v5")
    for t in range(16):
        d = ACC2 + 4 * t
        e(f"  ds_write_b128 v5, v[{d}:{d + 3}] offset:{1024 * t}")
    e("  s_waitcnt lgkmcnt(0)")
    e("  s_barrier")
    e("  v_lshlrev_b32 v5, 4, v1")
    e("  s_lshl_b32 s4, s3, 11")
    e("  v_add_u32 v5, s4, v5")
    e("  v_add_u32 v6, 0x10000, v5")
    for tt in range(2):
        for p in range(8):
            r = 16 + 4 * p + 32 * tt
            if p < 4:
                e(f"  ds_read_b128 v[{r}:{r + 3}], v5 offset:{16384 * p + 1024 * tt}")
            else:
                e(f"  ds_read_b128 v[{r}:{r + 3}], v6 offset:{16384 * (p - 4) + 1024 * tt}")
    e("  s_waitcnt lgkmcnt(0)")
    for tt in range(2):
        b0 = 16 + 32 * tt
        for p in range(1, 8):
            for r in range(4):
                e(f"  v_add_f32 v{b0 + r}, v{b0 + r}, v{b0 + 4 * p + r}")
    e("  s_and_b32 s4, s3, 1")
    e("  s_lshl_b32 s4, s4, 5")
    e("  s_lshl_b32 s5, s29, 6")
    e("  s_add_u32 s4, s4, s5")
    e("  v_add_u32 v9, s4, v9")
    e("  v_mul_u32_u24 v9, 1792, v9")
    e("  v_lshl_add_u32 v9, v10, 3, v9")
    e("  s_mul_i32 s4, s28, 896")
    e("  s_lshl_b32 s5, s30, 7")
    e("  s_add_u32 s4, s4, s5")
    e("  s_lshr_b32 s5, s3, 1")
    e("  s_lshl_b32 s5, s5, 5")
    e("  s_add_u32 s4, s4, s5")
    e("  v_add_u32 v9, s4, v9")
    for tt in range(2):
        b0 = 16 + 32 * tt
        e(f"  v_cvt_pk_bf16_f32 v{b0}, v{b0}, v{b0 + 1}")
        e(f"  v_cvt_pk_bf16_f32 v{b0 + 1}, v{b0 + 2}, v{b0 + 3}")
        e(f"  s_mov_b32 s53, {tt * 16 * 1792}")
        e(f"  buffer_store_dwordx2 v[{b0}:{b0 + 1}], v9, s[16:19], s53 offen")
    if "k2stamp" in MODE:
        stamp2()
        e("  s_lshl_b32 s4, s2, 3")
        e("  s_add_u32 s4, s4, s3")
        e("  s_lshl_b32 s4, s4, 7")
        e(f"  s_add_u32 s4, s4, {2 * 1152 * 8192}")
        e(f"  s_mov_b32 s14, {2 * 1152 * 8192 + 2048 * 128}")
        for k in st2:
            e(f"  v_mov_b32 v20, s{64 + k}")
            e(f"  v_mov_b32 v21, 0")
            e(f"  buffer_store_dword v20, v21, s[12:15], s4 offen offset:{4 * k}")
    e("L_k2_end:")
    e("  s_endpgm")

def main():
    hdr = open(f"cdna_kernels/{NAME}.s.ref").read().splitlines()
    for line in hdr:
        if line.startswith("; @launch"):
            break
        if "@launch" in line:
            continue
        e(line)
    e(f"; @launch kernel=attn_kernel grid=(256,1,1) block=(256,1,1) lds={NSLOT * SLOT}")
    e("; @launch kernel=oproj_kernel grid=(252,1,1) block=(512,1,1) lds=131072")
    e('.amdgcn_target "amdgcn-amd-amdhsa--gfx950"')
    e(".text")
    e(".globl attn_kernel")
    e(".p2align 8")
    e(".type attn_kernel,@function")
    kernel1()
    e(".globl oproj_kernel")
    e(".type oproj_kernel,@function")
    kernel2()
    e('.section .rodata,"a"')
    for name, nv, ao in (("attn_kernel", 480, 256), ("oproj_kernel", 192, 192)):
        e(".p2align 6")
        e(f".amdhsa_kernel {name}")
        e(f"  .amdhsa_next_free_vgpr {nv}")
        e("  .amdhsa_next_free_sgpr 100")
        e(f"  .amdhsa_accum_offset {ao}")
        e("  .amdhsa_group_segment_fixed_size 0")
        e("  .amdhsa_kernarg_size 104")
        e("  .amdhsa_user_sgpr_count 2")
        e("  .amdhsa_user_sgpr_kernarg_segment_ptr 1")
        e("  .amdhsa_system_sgpr_workgroup_id_x 1")
        e(".end_amdhsa_kernel")
    open(OUT, "w").write("\n".join(x for x in L if x is not None) + "\n")

main()
```

```python
import sys, os
MODE = os.environ.get("MODE", "")

NAME = "concat_heads__mha_block_cached__gqa_block_cached__near_ridge"
OUT = os.environ.get("OUT", f"cdna_kernels/{NAME}.s")

L = []
def e(s=""):
    L.append(s)

_lab = [0]
def newlabel(p="L"):
    _lab[0] += 1
    return f"{p}_{_lab[0]}"

NSLOT = int(os.environ.get("NSLOT", "10"))
SLOT = 16384
PD = NSLOT - 2
CP = int(os.environ.get("CP", "3"))
LOOK = int(os.environ.get("LOOK", "7"))
FBA = 192
QR = 32
SR = 128
PR = 224
VM = 10
VL = 13
VX = 16
VT = 19
def xreg(rt, ks):
    return 32 + 56 * rt + 4 * ks

TILES = [("W", m) for m in range(14)]
TILES += [("K", 0), ("K", 1)]
for c in range(8):
    if c < 7:
        TILES += [("K", 2 * c + 2), ("K", 2 * c + 3)]
    TILES += [("V", 2 * c), ("V", 2 * c + 1)]
NT = len(TILES)
assert NT == 46

def softmax_fillers(c, rare_blocks):
    F = []
    sb = SR + 48 * (c & 1)
    for rt in range(3):
        S = [sb + 16 * rt + i for i in range(16)]
        t = VT + 3 * rt
        x = VX + rt
        F += [f"v_max3_f32 v{t}, v{S[0]}, v{S[1]}, v{S[2]}",
              f"v_max3_f32 v{t+1}, v{S[3]}, v{S[4]}, v{S[5]}",
              f"v_max3_f32 v{t+2}, v{S[6]}, v{S[7]}, v{S[8]}",
              f"v_max3_f32 v{t}, v{t}, v{S[9]}, v{S[10]}",
              f"v_max3_f32 v{t+1}, v{t+1}, v{S[11]}, v{S[12]}",
              f"v_max3_f32 v{t+2}, v{t+2}, v{S[13]}, v{S[14]}",
              f"v_max3_f32 v{t}, v{t}, v{t+1}, v{S[15]}",
              f"v_max_f32 v{x}, v{t}, v{t+2}",
              f"v_mov_b32 v{t}, v{x}",
              "s_nop 1",
              f"v_permlane32_swap_b32 v{x}, v{t}",
              f"v_max_f32 v{x}, v{x}, v{t}",
              f"v_mov_b32 v{t}, v{x}",
              "s_nop 1",
              f"v_permlane16_swap_b32 v{x}, v{t}",
              f"v_max_f32 v{x}, v{x}, v{t}",
              f"v_mul_f32 v{x}, s51, v{x}"]
    if c == 0:
        for rt in range(3):
            F += [f"v_mov_b32 v{VM+rt}, v{VX+rt}"]
    else:
        lr = f"Lrare_{c}"
        F += [f"v_sub_f32 v{VT}, v{VX}, v{VM}",
              f"v_sub_f32 v{VT+1}, v{VX+1}, v{VM+1}",
              f"v_sub_f32 v{VT+2}, v{VX+2}, v{VM+2}",
              f"v_max3_f32 v{VT}, v{VT}, v{VT+1}, v{VT+2}",
              f"v_cmp_lt_f32 vcc, s52, v{VT}",
              f"s_cbranch_vccnz {lr}\n{lr}_ret:"]
        rare_blocks.append(lr)
    for rt in range(3):
        S = [sb + 16 * rt + i for i in range(16)]
        for i in range(16):
            F.append(f"v_fma_f32 v{S[i]}, v{S[i]}, s51, -v{VM+rt}")
        for i in range(16):
            F.append(f"v_exp_f32 v{S[i]}, v{S[i]}")
    for rt in range(3):
        S = [sb + 16 * rt + i for i in range(16)]
        t = VT + 3 * rt
        F += [f"v_add_f32 v{t}, v{S[0]}, v{S[1]}",
              f"v_add_f32 v{t+1}, v{S[2]}, v{S[3]}"]
        for i in range(4, 16, 2):
            F += [f"v_add_f32 v{t}, v{t}, v{S[i]}",
                  f"v_add_f32 v{t+1}, v{t+1}, v{S[i+1]}"]
        F += [f"v_add_f32 v{t}, v{t}, v{t+1}"]
        if c == 0:
            F += [f"v_mov_b32 v{VL+rt}, v{t}"]
        else:
            F += [f"v_add_f32 v{VL+rt}, v{VL+rt}, v{t}"]
    for rt in range(3):
        S = [sb + 16 * rt + i for i in range(16)]
        for j in range(2):
            for q in range(4):
                F.append(f"v_cvt_pk_bf16_f32 v{PR + 8*rt + 4*j + q}, v{S[8*j + 2*q]}, v{S[8*j + 2*q + 1]}")
    return F

def rare_block(lr):
    e(f"{lr}:")
    for rt in range(3):
        t = VT + 3 * rt
        e(f"  v_max_f32 v{t}, v{VM+rt}, v{VX+rt}")
        e(f"  v_sub_f32 v{t+1}, v{VM+rt}, v{t}")
        e(f"  v_exp_f32 v{t+1}, v{t+1}")
        e(f"  v_mov_b32 v{VM+rt}, v{t}")
        e(f"  v_mul_f32 v{VL+rt}, v{VL+rt}, v{t+1}")
        for i in range(64):
            a = 64 * rt + i
            e(f"  v_accvgpr_read_b32 v{t+2}, a{a}")
            e(f"  v_mul_f32 v{t+2}, v{t+2}, v{t+1}")
            e(f"  v_accvgpr_write_b32 a{a}, v{t+2}")
    e("  s_nop 1")
    e(f"  s_branch {lr}_ret")

XB = 32768
def xpieces():
    e("  v_lshlrev_b32 v28, 4, v1")
    e("  s_lshl_b32 s5, s3, 10")
    for p in range(32):
        lab = None
        if p == 31:
            lab = newlabel("Lxs")
            e("  s_cmp_ge_u32 s3, 2")
            e(f"  s_cbranch_scc1 {lab}")
        e(f"  s_add_u32 m0, s5, {XB + 4096 * p}")
        e(f"  s_add_u32 s53, s5, {4096 * p}")
        e(f"  buffer_load_dwordx4 v28, s[8:11], s53 offen lds")
        if lab:
            e(f"{lab}:")

def kernel1():
    e(f"attn_kernel:")
    e("  s_cmp_ge_u32 s2, 256")
    e("  s_cbranch_scc1 L_k1_end")
    if "stamp" in MODE:
        e("  s_memrealtime s[96:97]")
    e("  s_load_dwordx8 s[32:39], s[0:1], 0")
    e("  s_load_dwordx8 s[40:47], s[0:1], 40")
    e("  s_load_dwordx2 s[48:49], s[0:1], 96")
    e("  s_lshr_b32 s28, s2, 7")
    e("  s_lshr_b32 s29, s2, 4")
    e("  s_and_b32 s29, s29, 7")
    e("  s_and_b32 s30, s2, 15")
    e("  v_lshrrev_b32 v1, 6, v0")
    e("  s_nop 0")
    e("  v_readfirstlane_b32 s3, v1")
    e("  v_and_b32 v1, 63, v0")
    e("  s_waitcnt lgkmcnt(0)")
    e("  s_cmp_eq_u32 s28, 0")
    for i in range(8):
        e(f"  s_cselect_b32 s{32 + i}, s{32 + i}, s{40 + i}")
    e("  s_mul_i32 s4, s29, 129024")
    e("  s_add_u32 s8, s32, s4")
    e("  s_addc_u32 s9, s33, 0")
    e("  s_and_b32 s9, s9, 0xffff")
    e("  s_mov_b32 s10, 129024")
    e("  s_mov_b32 s11, 0x00020000")
    e("  s_lshl_b32 s4, s30, 9")
    e("  s_add_u32 s12, s38, s4")
    e("  s_addc_u32 s13, s39, 0")
    e("  s_and_b32 s13, s13, 0xffff")
    e(f"  s_sub_u32 s14, {448 * 8192}, s4")
    e("  s_mov_b32 s15, 0x00020000")
    e("  s_lshl_b32 s4, s29, 4")
    e("  s_add_u32 s4, s4, s30")
    e("  s_lshr_b32 s5, s4, 14")
    e("  s_lshl_b32 s4, s4, 18")
    e("  s_add_u32 s16, s34, s4")
    e("  s_addc_u32 s17, s35, s5")
    e("  s_and_b32 s17, s17, 0xffff")
    e("  s_mov_b32 s18, 262144")
    e("  s_mov_b32 s19, 0x00020000")
    e("  s_add_u32 s20, s36, s4")
    e("  s_addc_u32 s21, s37, s5")
    e("  s_and_b32 s21, s21, 0xffff")
    e("  s_mov_b32 s22, 262144")
    e("  s_mov_b32 s23, 0x00020000")
    e("  s_mov_b32 s24, s48")
    e("  s_and_b32 s25, s49, 0xffff")
    e(f"  s_mov_b32 s26, {2 * 1152 * 8192}")
    e("  s_mov_b32 s27, 0x00020000")
    e("  s_mov_b32 s51, 0x3db8aa3b")
    e("  s_mov_b32 s52, 0x41000000")
    e("  s_cmp_eq_u32 s3, 3")
    e("  s_cbranch_scc1 L_loader")
    e("  v_and_b32 v6, 15, v1")
    e("  v_lshrrev_b32 v7, 4, v1")
    e("  v_and_b32 v9, 7, v6")
    e("  v_lshlrev_b32 v9, 1, v9")
    e("  v_xor_b32 v9, v9, v7")
    e("  v_lshlrev_b32 v9, 4, v9")
    e("  v_lshl_add_u32 v2, v6, 9, v9")
    e("  v_lshrrev_b32 v8, 2, v1")
    e("  v_and_b32 v9, 7, v8")
    e("  v_lshlrev_b32 v9, 1, v9")
    e("  v_bfe_u32 v6, v1, 1, 1")
    e("  v_xor_b32 v6, v6, v9")
    e("  v_lshlrev_b32 v6, 4, v6")
    e("  v_lshl_add_u32 v3, v8, 9, v6")
    e("  v_and_b32 v6, 1, v1")
    e("  v_lshl_add_u32 v3, v6, 3, v3")
    e("  v_and_b32 v6, 3, v1")
    e("  v_xor_b32 v6, v6, v9")
    e("  v_lshlrev_b32 v6, 4, v6")
    e("  v_lshl_add_u32 v4, v8, 9, v6")

    e(f"  s_mul_i32 s6, s3, {CP}")
    e(f"  s_lshl_b32 s50, s6, 10")
    e("  s_lshl_b32 s6, s6, 1")
    e("  v_lshrrev_b32 v8, 5, v1")
    e("  v_add_u32 v8, s6, v8")
    e("  v_and_b32 v9, 31, v1")
    for i in range(CP):
        e(f"  v_add_u32 v6, {2 * i}, v8")
        e(f"  v_and_b32 v7, 7, v6")
        e(f"  v_lshlrev_b32 v7, 1, v7")
        e(f"  v_xor_b32 v7, v7, v9")
        e(f"  v_lshlrev_b32 v7, 4, v7")
        e(f"  v_lshl_add_u32 v{248 + i}, v6, 9, v7")
        e(f"  v_lshl_add_u32 v{248 + CP + i}, v6, 13, v7")
    def cpieces(n):
        kind, t = TILES[n]
        sbase = (n % NSLOT) * SLOT
        out = []
        if "nodma" in MODE and kind != "W" and n >= 20:
            return out
        for i in range(CP):
            if kind == "W":
                srd, so, v, nt = 12, 32 * t * 8192, 248 + CP + i, ""
            else:
                srd, so, v, nt = (16 if kind == "K" else 20), t * 16384, 248 + i, " nt"
            out += [f"s_add_u32 m0, s50, {sbase + 1024 * i}", f"s_mov_b32 s53, {so}",
                    f"buffer_load_dwordx4 v{v}, s[{srd}:{srd + 3}], s53 offen{nt} lds"]
        return out
    xpieces()
    for n in range(2):
        for x in cpieces(n):
            e("  " + x)
    e(f"  s_waitcnt vmcnt({2 * CP})")
    e("  s_barrier")
    e("  v_and_b32 v6, 15, v1")
    e("  v_lshrrev_b32 v7, 4, v1")
    e("  s_mul_i32 s5, s3, 48")
    e("  v_add_u32 v8, s5, v6")
    e("  v_mul_u32_u24 v8, 896, v8")
    e("  v_lshl_add_u32 v8, v7, 3, v8")
    e(f"  v_add_u32 v8, {XB}, v8")
    cnt = 0
    for rt in range(3):
        for ks in range(14):
            r = xreg(rt, ks)
            e(f"  ds_read_b64 v[{r}:{r + 1}], v8 offset:{rt * 16 * 896 + 64 * ks}")
            e(f"  ds_read_b64 v[{r + 2}:{r + 3}], v8 offset:{rt * 16 * 896 + 64 * ks + 32}")
            cnt += 2
            if cnt % 14 == 0:
                e("  s_waitcnt lgkmcnt(6)")
    e("  s_waitcnt lgkmcnt(0)")
    e("  s_barrier")
    for n in range(2, PD):
        for x in cpieces(n):
            e("  " + x)
    frags = []
    atmp = [6, 7, 8, 9]
    ac = [0]
    def nexta():
        ac[0] += 1
        return atmp[ac[0] % 4]
    for n, (kind, t) in enumerate(TILES):
        sbase = (n % NSLOT) * SLOT
        for f in range(16):
            fr = dict(pre=[], reads=[], mf=[], post=[], phase=n)
            if f == 0:
                last = min(n + PD - 1, NT - 1)
                fr["pre"].append(f"s_waitcnt vmcnt({CP * (last - n)})")
                fr["pre"].append("s_barrier")
                if n + PD < NT:
                    fr["pre"] += cpieces(n + PD)
                a0 = {"W": 4, "K": 2, "V": 3}[kind]
                fr["pre"].append(f"v_add_u32 v5, {sbase}, v{a0}")
            if kind == "W":
                s, hb = f >> 1, f & 1
                if hb == 0:
                    a = nexta(); cur = a
                    fr["pre"].append(f"v_xor_b32 v{a}, {(s & 3) << 6}, v5")
                a = cur
                off = 256 * (s >> 2) + 8 * hb
                fr["reads"] = [f"ds_read_b64_tr_b16 a[{{fb}}:{{fb1}}], v{a} offset:{off}",
                               f"ds_read_b64_tr_b16 a[{{fb2}}:{{fb3}}], v{a} offset:{off + 8192}"]
                for rt in range(3):
                    d = 64 * rt + 4 * f
                    c = "0" if t == 0 else f"a[{d}:{d + 3}]"
                    b = xreg(rt, t)
                    fr["mf"].append(f"v_mfma_f32_16x16x32_bf16 a[{d}:{d + 3}], a[{{fb}}:{{fb3}}], v[{b}:{b + 3}], {c}")
            elif kind == "V":
                a = nexta()
                fr["pre"].append(f"v_xor_b32 v{a}, {(f & 7) << 5}, v5")
                off = 256 * (f >> 3)
                fr["reads"] = [f"ds_read_b64_tr_b16 a[{{fb}}:{{fb1}}], v{a} offset:{off}",
                               f"ds_read_b64_tr_b16 a[{{fb2}}:{{fb3}}], v{a} offset:{off + 8192}"]
                for rt in range(3):
                    d = 64 * rt + 4 * f
                    c = "0" if t == 0 else f"a[{d}:{d + 3}]"
                    b = PR + 8 * rt + 4 * (t & 1)
                    fr["mf"].append(f"v_mfma_f32_16x16x32_bf16 a[{d}:{d + 3}], a[{{fb}}:{{fb3}}], v[{b}:{b + 3}], {c}")
            else:
                s, tl = f >> 1, f & 1
                if tl == 0:
                    a = nexta(); cur = a
                    fr["pre"].append(f"v_xor_b32 v{a}, {(s & 3) << 6}, v5")
                a = cur
                off = 256 * (s >> 2) + 8192 * tl
                fr["reads"] = [f"ds_read_b128 a[{{fb}}:{{fb3}}], v{a} offset:{off}"]
                ch = t >> 1
                for rt in range(3):
                    d = SR + 48 * (ch & 1) + 16 * rt + 4 * (2 * (t & 1) + tl)
                    c = "0" if s == 0 else f"v[{d}:{d + 3}]"
                    q = QR + 32 * rt + 4 * s
                    fr["mf"].append(f"v_mfma_f32_16x16x32_bf16 v[{d}:{d + 3}], a[{{fb}}:{{fb3}}], v[{q}:{q + 3}], {c}")
            frags.append(fr)
    N = len(frags)
    post = ["s_nop 7", "s_nop 1"]
    for rt in range(3):
        for s in range(8):
            for q in range(4):
                a = 64 * rt + 8 * s + 2 * q
                post += [f"v_accvgpr_read_b32 v{VT}, a{a}", f"v_accvgpr_read_b32 v{VT+1}, a{a+1}",
                         f"v_cvt_pk_bf16_f32 v{QR + 32*rt + 4*s + q}, v{VT}, v{VT+1}"]
    post += ["s_nop 1"]
    frags[14 * 16 - 1]["post"] = post
    rare = []
    fillers = {}
    tidx = {tk: n for n, tk in enumerate(TILES)}
    for c in range(8):
        F = softmax_fillers(c, rare)
        if c < 7:
            p0 = tidx[("K", 2 * c + 2)]
            h = len(F) // 2
            fillers[p0] = F[:h]
            fillers[p0 + 1] = F[h:]
        else:
            frags[(tidx[("V", 13)] + 1) * 16 - 1]["post"] = ["s_nop 7"] + F + ["s_nop 1"]

    def fmt(s, i):
        fb = FBA + 4 * (i % 8)
        return s.format(fb=fb, fb1=fb + 1, fb2=fb + 2, fb3=fb + 3)
    stamps = []
    def stamp():
        if "stamp" not in MODE:
            return
        k = len(stamps)
        stamps.append(k)
        e("  s_memtime s[60:61]")
        e("  s_waitcnt lgkmcnt(0)")
        e(f"  s_mov_b32 s{64 + k}, s60")
        if k == 0:
            e("  s_memrealtime s[60:61]")
            e("  s_waitcnt lgkmcnt(0)")
            e(f"  s_mov_b32 s98, s60")
    def issue_reads(i):
        if i % 32 == 0 or i == 14 * 16:
            stamp()
        for x in frags[i]["pre"]:
            e("  " + x)
        for x in frags[i]["reads"]:
            e("  " + fmt(x, i))
    stamp()

    for i in range(LOOK):
        issue_reads(i)
    for i in range(N):
        out = sum(len(frags[k]["reads"]) for k in range(i + 1, min(i + LOOK, N)))
        e(f"  s_waitcnt lgkmcnt({out})")
        ph = frags[i]["phase"]
        F = fillers.get(ph, [])
        fi = i % 16
        side = []
        if i + LOOK < N:
            j = i + LOOK
            if "stamp" in MODE and (j % 32 == 0 or j == 14 * 16):
                side.append("@stamp")
            side += list(frags[j]["pre"]) + [fmt(x, j) for x in frags[j]["reads"]]
        ns = len(side)
        for mi, m in enumerate(frags[i]["mf"]):
            if "nocompute" not in MODE:
                e("  " + fmt(m, i))
            for x in side[mi * ns // 3:(mi + 1) * ns // 3]:
                if x == "@stamp":
                    stamp()
                else:
                    e("  " + x)
            k = fi * 3 + mi
            if F and k >= 3:
                lo = (k - 3) * len(F) // 45
                hi = (k - 2) * len(F) // 45
                for x in F[lo:hi]:
                    e("  " + x)
        for x in frags[i]["post"]:
            e("  " + x)
    e("  s_nop 7")
    e("  s_nop 1")
    for rt in range(3):
        l = VL + rt
        e(f"  v_mov_b32 v{VT}, v{l}")
        e("  s_nop 1")
        e(f"  v_permlane32_swap_b32 v{l}, v{VT}")
        e(f"  v_add_f32 v{l}, v{l}, v{VT}")
        e(f"  v_mov_b32 v{VT}, v{l}")
        e("  s_nop 1")
        e(f"  v_permlane16_swap_b32 v{l}, v{VT}")
        e(f"  v_add_f32 v{l}, v{l}, v{VT}")
        e(f"  v_rcp_f32 v{l}, v{l}")
    e("  s_barrier")
    e("  s_mul_i32 s4, s3, 25344")
    e("  v_and_b32 v9, 15, v1")
    e("  v_mul_u32_u24 v9, 528, v9")
    e("  v_lshrrev_b32 v8, 4, v1")
    e("  v_lshl_add_u32 v9, v8, 3, v9")
    e("  v_add_u32 v9, s4, v9")
    k = 0
    for rt in range(3):
        for t in range(16):
            a = 64 * rt + 4 * t
            tb = 128 + 8 * (k % 8); k += 1
            for r in range(4):
                e(f"  v_accvgpr_read_b32 v{tb + r}, a{a + r}")
            for r in range(4):
                e(f"  v_mul_f32 v{tb + r}, v{VL + rt}, v{tb + r}")
            e(f"  v_cvt_pk_bf16_f32 v{tb + 4}, v{tb}, v{tb + 1}")
            e(f"  v_cvt_pk_bf16_f32 v{tb + 5}, v{tb + 2}, v{tb + 3}")
            e(f"  ds_write_b64 v9, v[{tb + 4}:{tb + 5}] offset:{rt * 16 * 528 + 32 * t}")
    e("  v_lshrrev_b32 v8, 5, v1")
    e("  v_and_b32 v7, 31, v1")
    e("  v_mul_u32_u24 v9, 528, v8")
    e("  v_lshl_add_u32 v9, v7, 4, v9")
    e("  v_add_u32 v9, s4, v9")
    e("  s_lshl_b32 s4, s28, 4")
    e("  s_add_u32 s4, s4, s30")
    e("  s_mul_i32 s4, s4, 1152")
    e("  s_mul_i32 s5, s29, 144")
    e("  s_add_u32 s4, s4, s5")
    e("  s_mul_i32 s5, s3, 48")
    e("  s_add_u32 s4, s4, s5")
    e("  s_lshl_b32 s4, s4, 9")
    e("  v_lshlrev_b32 v8, 9, v8")
    e("  v_lshl_add_u32 v8, v7, 4, v8")
    e("  s_waitcnt lgkmcnt(0)")
    for hh in range(2):
        for i in range(12 * hh, 12 * hh + 12):
            e(f"  ds_read_b128 v[{32 + 4 * i}:{35 + 4 * i}], v9 offset:{2 * i * 528}")
        for i in range(12 * hh, 12 * hh + 12):
            e(f"  s_waitcnt lgkmcnt({12 * hh + 11 - i})")
            e(f"  s_add_u32 s5, s4, {1024 * i}")
            e(f"  buffer_store_dwordx4 v[{32 + 4 * i}:{35 + 4 * i}], v8, s[24:27], s5 offen")
    if "stamp" in MODE:
        stamp()
        e("  s_memrealtime s[60:61]")
        e("  s_waitcnt lgkmcnt(0)")
        e("  s_sub_u32 s60, s60, s98")
        e(f"  s_add_u32 s{64 + len(stamps)}, s60, s64")
        stamps.append(len(stamps))
        e("  s_memrealtime s[60:61]")
        e("  s_waitcnt lgkmcnt(0)")
        e(f"  s_mov_b32 s{64 + len(stamps)}, s96")
        stamps.append(len(stamps))
        e(f"  s_mov_b32 s{64 + len(stamps)}, s98")
        stamps.append(len(stamps))
        e(f"  s_mov_b32 s{64 + len(stamps)}, s60")
        stamps.append(len(stamps))
        e("  s_lshl_b32 s4, s2, 2")
        e("  s_add_u32 s4, s4, s3")
        e("  s_lshl_b32 s4, s4, 8")
        e(f"  s_add_u32 s4, s4, {2 * 1152 * 8192}")
        e(f"  s_mov_b32 s26, {2 * 1152 * 8192 + 1024 * 256}")
        for k in stamps:
            e(f"  v_mov_b32 v20, s{64 + k}")
            e(f"  v_mov_b32 v21, 0")
            e(f"  buffer_store_dword v20, v21, s[24:27], s4 offen offset:{4 * k}")
    e("  s_endpgm")
    for lr in rare:
        rare_block(lr)
    e("L_loader:")
    e("  v_lshrrev_b32 v10, 5, v1")
    e("  v_and_b32 v11, 31, v1")
    for j in range(4):
        e(f"  v_add_u32 v12, {2 * j}, v10")
        e(f"  v_lshlrev_b32 v13, 1, v12")
        if "noswz" in MODE:
            e(f"  v_mov_b32 v13, v11")
        else:
            e(f"  v_xor_b32 v13, v13, v11")
        e(f"  v_lshlrev_b32 v13, 4, v13")
        e(f"  v_lshl_add_u32 v{2 + j}, v12, 9, v13")
        e(f"  v_lshl_add_u32 v{6 + j}, v12, 13, v13")
    def issue(n):
        kind, t = TILES[n]
        sbase = (n % NSLOT) * SLOT
        if "nodma" in MODE and kind != "W" and n >= 20:
            return
        for j in range(3 * CP, 16):
            if kind == "W":
                srd, so, v = 12, (32 * t + 8 * (j >> 2)) * 8192, 6 + (j & 3)
            else:
                srd, so, v = (16 if kind == "K" else 20), t * 16384 + (j >> 2) * 4096, 2 + (j & 3)
            e(f"  s_mov_b32 m0, {sbase + 1024 * j}")
            e(f"  s_mov_b32 s53, {so}")
            nt = " nt" if (kind != "W" and "nont" not in MODE) else ""
            e(f"  buffer_load_dwordx4 v{v}, s[{srd}:{srd + 3}], s53 offen{nt} lds")
    xpieces()
    for n in range(2):
        issue(n)
    e(f"  s_waitcnt vmcnt({2 * (16 - 3 * CP)})")
    e("  s_barrier")
    e("  s_barrier")
    for n in range(2, PD):
        issue(n)
    for n in range(NT):
        last = min(n + PD - 1, NT - 1)
        e(f"  s_waitcnt vmcnt({min((16 - 3 * CP) * (last - n), 56)})")
        e("  s_barrier")
        if n + PD < NT:
            issue(n + PD)
    e("  s_barrier")
    e("L_k1_end:")
    e("  s_endpgm")

def kernel2():
    NS2 = 5; SL2 = 32768; PD2 = 4; NSUB = 32
    ACC2 = 64
    AF = 16
    BFr = 32
    e(".p2align 8")
    e("oproj_kernel:")
    e("  s_cmp_ge_u32 s2, 252")
    e("  s_cbranch_scc1 L_k2_end")
    e("  s_load_dwordx2 s[32:33], s[0:1], 32")
    e("  s_load_dwordx2 s[34:35], s[0:1], 72")
    e("  s_load_dwordx2 s[36:37], s[0:1], 80")
    e("  s_load_dwordx2 s[38:39], s[0:1], 96")
    e("  s_and_b32 s4, s2, 7")
    e("  s_lshr_b32 s5, s2, 3")
    e("  s_lshl_b32 s6, s4, 5")
    e("  s_mul_i32 s7, s4, 31")
    e("  s_add_u32 s7, s7, 4")
    e("  s_cmp_lt_u32 s4, 4")
    e("  s_cselect_b32 s6, s6, s7")
    e("  s_add_u32 s6, s6, s5")
    e("  s_cmp_ge_u32 s6, 126")
    e("  s_cselect_b32 s28, 1, 0")
    e("  s_mul_i32 s4, s28, 126")
    e("  s_sub_u32 s4, s6, s4")
    e("  s_mul_i32 s29, s4, 9363")
    e("  s_lshr_b32 s29, s29, 16")
    e("  s_mul_i32 s5, s29, 7")
    e("  s_sub_u32 s30, s4, s5")
    e("  v_lshrrev_b32 v1, 6, v0")
    e("  s_nop 0")
    e("  v_readfirstlane_b32 s3, v1")
    e("  v_and_b32 v1, 63, v0")
    e("  s_waitcnt lgkmcnt(0)")
    e("  s_cmp_eq_u32 s28, 0")
    e("  s_cselect_b32 s32, s32, s34")
    e("  s_cselect_b32 s33, s33, s35")
    e("  s_mov_b32 s8, s32")
    e("  s_and_b32 s9, s33, 0xffff")
    e(f"  s_mov_b32 s10, {4096 * 896}")
    e("  s_mov_b32 s11, 0x00020000")
    e("  s_mov_b32 s12, s38")
    e("  s_and_b32 s13, s39, 0xffff")
    e(f"  s_mov_b32 s14, {2 * 1152 * 8192}")
    e("  s_mov_b32 s15, 0x00020000")
    e("  s_mov_b32 s16, s36")
    e("  s_and_b32 s17, s37, 0xffff")
    e(f"  s_mov_b32 s18, {1152 * 1792}")
    e("  s_mov_b32 s19, 0x00020000")
    e("  s_lshl_b32 s50, s3, 11")
    e("  s_and_b32 s40, s3, 3")
    e("  s_lshr_b32 s41, s3, 2")
    e("  v_and_b32 v9, 15, v1")
    e("  v_lshrrev_b32 v10, 4, v1")
    e("  v_lshrrev_b32 v11, 3, v1")
    e("  v_bfe_u32 v12, v11, 1, 1")
    e("  v_lshlrev_b32 v12, 1, v12")
    e("  v_and_b32 v13, 7, v1")
    e("  v_xor_b32 v12, v12, v13")
    e("  v_lshlrev_b32 v12, 4, v12")
    e("  s_lshl_b32 s5, s3, 4")
    e("  v_add_u32 v11, s5, v11")
    e("  v_mul_u32_u24 v11, 896, v11")
    e("  v_add_u32 v2, v11, v12")
    e("  s_lshl_b32 s5, s30, 7")
    e("  v_add_u32 v2, s5, v2")
    e("  v_xor_b32 v3, 64, v2")
    e(f"  v_add_u32 v3, {8 * 896}, v3")
    e("  v_lshlrev_b32 v12, 1, v10")
    e("  v_xor_b32 v12, v12, v9")
    e("  v_lshlrev_b32 v12, 4, v12")
    e("  s_lshl_b32 s4, s28, 4")
    e("  s_mul_i32 s4, s4, 1152")
    e("  s_lshl_b32 s5, s29, 6")
    e("  s_add_u32 s4, s4, s5")
    e("  s_lshl_b32 s5, s3, 3")
    e("  s_add_u32 s4, s4, s5")
    e("  v_add_u32 v11, s4, v10")
    e("  v_lshlrev_b32 v11, 9, v11")
    e("  v_add_u32 v4, v11, v12")
    e("  v_xor_b32 v5, 128, v4")
    e(f"  v_add_u32 v5, {4 * 512}, v5")
    e("  v_bfe_u32 v11, v1, 2, 2")
    e("  v_lshl_add_u32 v11, v10, 3, v11")
    e("  s_lshl_b32 s5, s40, 5")
    e("  v_add_u32 v11, s5, v11")
    e("  v_bfe_u32 v12, v1, 3, 1")
    e("  v_bfe_u32 v13, v1, 4, 1")
    e("  v_lshl_add_u32 v12, v13, 1, v12")
    e("  v_lshlrev_b32 v12, 1, v12")
    e("  v_bfe_u32 v13, v1, 1, 1")
    e("  v_or_b32 v12, v12, v13")
    e("  v_lshlrev_b32 v12, 4, v12")
    e("  v_lshl_add_u32 v6, v11, 7, v12")
    e("  v_and_b32 v13, 1, v1")
    e("  v_lshl_add_u32 v6, v13, 3, v6")
    e("  s_lshl_b32 s5, s40, 2")
    e("  v_add_u32 v12, s5, v10")
    e("  v_and_b32 v13, 7, v9")
    e("  v_lshlrev_b32 v13, 1, v13")
    e("  v_xor_b32 v12, v12, v13")
    e("  v_lshlrev_b32 v12, 4, v12")
    e("  s_lshl_b32 s5, s41, 5")
    e("  v_add_u32 v11, s5, v9")
    e("  v_lshl_add_u32 v7, v11, 8, v12")
    e("  v_add_u32 v7, 16384, v7")

    def loads(sb):
        sl = (sb % NS2) * SL2
        for j in range(2):
            e(f"  s_add_u32 m0, s50, {sl + 1024 * j}")
            e(f"  s_mov_b32 s53, {128 * sb * 896}")
            e(f"  buffer_load_dwordx4 v{2 + j}, s[8:11], s53 offen lds")
        for j in range(2):
            e(f"  s_add_u32 m0, s50, {sl + 16384 + 1024 * j}")
            e(f"  s_mov_b32 s53, {(sb >> 1) * 1152 * 512 + (sb & 1) * 256}")
            e(f"  buffer_load_dwordx4 v{4 + j}, s[12:15], s53 offen lds")
    for sb in range(PD2):
        loads(sb)
    for sb in range(NSUB):
        sl = (sb % NS2) * SL2
        last = min(sb + PD2 - 1, NSUB - 1)
        e(f"  s_waitcnt vmcnt({4 * (last - sb)})")
        e("  s_barrier")
        e(f"  v_add_u32 v8, {sl}, v6")
        e(f"  v_add_u32 v11, {sl}, v7")
        for mi in range(2):
            e(f"  ds_read_b128 v[{BFr + 4 * mi}:{BFr + 4 * mi + 3}], v11 offset:{16 * mi * 256}")
        for ni in range(4):
            e(f"  v_xor_b32 v{12 + ni}, {ni << 5}, v8")
            e(f"  ds_read_b64_tr_b16 v[{AF + 4 * ni}:{AF + 4 * ni + 1}], v{12 + ni}")
            e(f"  ds_read_b64_tr_b16 v[{AF + 4 * ni + 2}:{AF + 4 * ni + 3}], v{12 + ni} offset:512")
        if sb + PD2 < NSUB:
            loads(sb + PD2)
        for ni in range(4):
            e(f"  s_waitcnt lgkmcnt({2 * (3 - ni)})")
            for mi in range(2):
                d = ACC2 + 4 * (2 * ni + mi)
                c = "0" if sb == 0 else f"v[{d}:{d + 3}]"
                b = BFr + 4 * mi
                e(f"  v_mfma_f32_16x16x32_bf16 v[{d}:{d + 3}], v[{AF + 4 * ni}:{AF + 4 * ni + 3}], v[{b}:{b + 3}], {c}")
    e("  s_nop 7")
    e("  s_nop 1")
    e("  s_barrier")
    e("  v_lshlrev_b32 v5, 4, v1")
    e("  s_lshl_b32 s4, s3, 13")
    e("  v_add_u32 v5, s4, v5")
    for t in range(8):
        d = ACC2 + 4 * t
        e(f"  ds_write_b128 v5, v[{d}:{d + 3}] offset:{1024 * t}")
    e("  s_waitcnt lgkmcnt(0)")
    e("  s_barrier")
    e("  v_lshlrev_b32 v5, 4, v1")
    e("  s_lshl_b32 s4, s41, 15")
    e("  s_lshl_b32 s5, s40, 11")
    e("  s_add_u32 s4, s4, s5")
    e("  v_add_u32 v5, s4, v5")
    for tt in range(2):
        for p in range(4):
            r = 16 + 4 * p + 16 * tt
            e(f"  ds_read_b128 v[{r}:{r + 3}], v5 offset:{8192 * p + 1024 * tt}")
    e("  s_waitcnt lgkmcnt(0)")
    for tt in range(2):
        b0 = 16 + 16 * tt
        for p in range(1, 4):
            for r in range(4):
                e(f"  v_add_f32 v{b0 + r}, v{b0 + r}, v{b0 + 4 * p + r}")
    e("  s_lshl_b32 s4, s41, 5")
    e("  s_lshl_b32 s5, s29, 6")
    e("  s_add_u32 s4, s4, s5")
    e("  v_add_u32 v9, s4, v9")
    e("  v_mul_u32_u24 v9, 1792, v9")
    e("  v_lshl_add_u32 v9, v10, 3, v9")
    e("  s_mul_i32 s4, s28, 896")
    e("  s_lshl_b32 s5, s30, 7")
    e("  s_add_u32 s4, s4, s5")
    e("  s_lshl_b32 s5, s40, 5")
    e("  s_add_u32 s4, s4, s5")
    e("  v_add_u32 v9, s4, v9")
    for tt in range(2):
        b0 = 16 + 16 * tt
        e(f"  v_cvt_pk_bf16_f32 v{b0}, v{b0}, v{b0 + 1}")
        e(f"  v_cvt_pk_bf16_f32 v{b0 + 1}, v{b0 + 2}, v{b0 + 3}")
        e(f"  s_mov_b32 s53, {tt * 16 * 1792}")
        e(f"  buffer_store_dwordx2 v[{b0}:{b0 + 1}], v9, s[16:19], s53 offen")
    e("L_k2_end:")
    e("  s_endpgm")

def main():
    hdr = open(f"cdna_kernels/{NAME}.s.ref").read().splitlines()
    for line in hdr:
        if line.startswith("; @launch"):
            break
        if "@launch" in line:
            continue
        e(line)
    e(f"; @launch kernel=attn_kernel grid=(256,1,1) block=(256,1,1) lds={NSLOT * SLOT}")
    e("; @launch kernel=oproj_kernel grid=(252,1,1) block=(512,1,1) lds=163840")
    e('.amdgcn_target "amdgcn-amd-amdhsa--gfx950"')
    e(".text")
    e(".globl attn_kernel")
    e(".p2align 8")
    e(".type attn_kernel,@function")
    kernel1()
    e(".globl oproj_kernel")
    e(".type oproj_kernel,@function")
    kernel2()
    e('.section .rodata,"a"')
    for name, nv, ao in (("attn_kernel", 480, 256), ("oproj_kernel", 96, 96)):
        e(".p2align 6")
        e(f".amdhsa_kernel {name}")
        e(f"  .amdhsa_next_free_vgpr {nv}")
        e("  .amdhsa_next_free_sgpr 100")
        e(f"  .amdhsa_accum_offset {ao}")
        e("  .amdhsa_group_segment_fixed_size 0")
        e("  .amdhsa_kernarg_size 104")
        e("  .amdhsa_user_sgpr_count 2")
        e("  .amdhsa_user_sgpr_kernarg_segment_ptr 1")
        e("  .amdhsa_system_sgpr_workgroup_id_x 1")
        e(".end_amdhsa_kernel")
    open(OUT, "w").write("\n".join(x for x in L if x is not None) + "\n")

main()
```

```python
import sys, os
MODE = os.environ.get("MODE", "")

NAME = "concat_heads__mha_block_cached__gqa_block_cached__near_ridge"
OUT = os.environ.get("OUT", f"cdna_kernels/{NAME}.s")

L = []
def e(s=""):
    L.append(s)

_lab = [0]
def newlabel(p="L"):
    _lab[0] += 1
    return f"{p}_{_lab[0]}"

NSLOT = int(os.environ.get("NSLOT", "10"))
SLOT = 16384
PD = NSLOT - 2
CP = int(os.environ.get("CP", "3"))
LOOK = int(os.environ.get("LOOK", "7"))
FBA = 192
QR = 32
SR = 128
PR = 224
VM = 10
VL = 13
VX = 16
VT = 19
def xreg(rt, ks):
    return 32 + 56 * rt + 4 * ks

TILES = [("W", m) for m in range(14)]
TILES += [("K", 0), ("K", 1)]
for c in range(8):
    if c < 7:
        TILES += [("K", 2 * c + 2), ("K", 2 * c + 3)]
    TILES += [("V", 2 * c), ("V", 2 * c + 1)]
NT = len(TILES)
assert NT == 46

def softmax_fillers(c, rare_blocks):
    F = []
    sb = SR + 48 * (c & 1)
    for rt in range(3):
        S = [sb + 16 * rt + i for i in range(16)]
        t = VT + 3 * rt
        x = VX + rt
        F += [f"v_max3_f32 v{t}, v{S[0]}, v{S[1]}, v{S[2]}",
              f"v_max3_f32 v{t+1}, v{S[3]}, v{S[4]}, v{S[5]}",
              f"v_max3_f32 v{t+2}, v{S[6]}, v{S[7]}, v{S[8]}",
              f"v_max3_f32 v{t}, v{t}, v{S[9]}, v{S[10]}",
              f"v_max3_f32 v{t+1}, v{t+1}, v{S[11]}, v{S[12]}",
              f"v_max3_f32 v{t+2}, v{t+2}, v{S[13]}, v{S[14]}",
              f"v_max3_f32 v{t}, v{t}, v{t+1}, v{S[15]}",
              f"v_max_f32 v{x}, v{t}, v{t+2}",
              f"v_mov_b32 v{t}, v{x}",
              "s_nop 1",
              f"v_permlane32_swap_b32 v{x}, v{t}",
              f"v_max_f32 v{x}, v{x}, v{t}",
              f"v_mov_b32 v{t}, v{x}",
              "s_nop 1",
              f"v_permlane16_swap_b32 v{x}, v{t}",
              f"v_max_f32 v{x}, v{x}, v{t}",
              f"v_mul_f32 v{x}, s51, v{x}"]
    if c == 0:
        for rt in range(3):
            F += [f"v_mov_b32 v{VM+rt}, v{VX+rt}"]
    else:
        lr = f"Lrare_{c}"
        F += [f"v_sub_f32 v{VT}, v{VX}, v{VM}",
              f"v_sub_f32 v{VT+1}, v{VX+1}, v{VM+1}",
              f"v_sub_f32 v{VT+2}, v{VX+2}, v{VM+2}",
              f"v_max3_f32 v{VT}, v{VT}, v{VT+1}, v{VT+2}",
              f"v_cmp_lt_f32 vcc, s52, v{VT}",
              f"s_cbranch_vccnz {lr}\n{lr}_ret:"]
        rare_blocks.append(lr)
    for rt in range(3):
        S = [sb + 16 * rt + i for i in range(16)]
        for i in range(16):
            F.append(f"v_fma_f32 v{S[i]}, v{S[i]}, s51, -v{VM+rt}")
        for i in range(16):
            F.append(f"v_exp_f32 v{S[i]}, v{S[i]}")
    for rt in range(3):
        S = [sb + 16 * rt + i for i in range(16)]
        t = VT + 3 * rt
        F += [f"v_add_f32 v{t}, v{S[0]}, v{S[1]}",
              f"v_add_f32 v{t+1}, v{S[2]}, v{S[3]}"]
        for i in range(4, 16, 2):
            F += [f"v_add_f32 v{t}, v{t}, v{S[i]}",
                  f"v_add_f32 v{t+1}, v{t+1}, v{S[i+1]}"]
        F += [f"v_add_f32 v{t}, v{t}, v{t+1}"]
        if c == 0:
            F += [f"v_mov_b32 v{VL+rt}, v{t}"]
        else:
            F += [f"v_add_f32 v{VL+rt}, v{VL+rt}, v{t}"]
    for rt in range(3):
        S = [sb + 16 * rt + i for i in range(16)]
        for j in range(2):
            for q in range(4):
                F.append(f"v_cvt_pk_bf16_f32 v{PR + 8*rt + 4*j + q}, v{S[8*j + 2*q]}, v{S[8*j + 2*q + 1]}")
    return F

def rare_block(lr):
    e(f"{lr}:")
    for rt in range(3):
        t = VT + 3 * rt
        e(f"  v_max_f32 v{t}, v{VM+rt}, v{VX+rt}")
        e(f"  v_sub_f32 v{t+1}, v{VM+rt}, v{t}")
        e(f"  v_exp_f32 v{t+1}, v{t+1}")
        e(f"  v_mov_b32 v{VM+rt}, v{t}")
        e(f"  v_mul_f32 v{VL+rt}, v{VL+rt}, v{t+1}")
        for i in range(64):
            a = 64 * rt + i
            e(f"  v_accvgpr_read_b32 v{t+2}, a{a}")
            e(f"  v_mul_f32 v{t+2}, v{t+2}, v{t+1}")
            e(f"  v_accvgpr_write_b32 a{a}, v{t+2}")
    e("  s_nop 1")
    e(f"  s_branch {lr}_ret")

XB = 32768
WW = 20971520
def xpieces():
    e("  v_lshlrev_b32 v28, 4, v1")
    e("  s_lshl_b32 s5, s3, 10")
    for p in range(32):
        lab = None
        if p == 31:
            lab = newlabel("Lxs")
            e("  s_cmp_ge_u32 s3, 2")
            e(f"  s_cbranch_scc1 {lab}")
        e(f"  s_add_u32 m0, s5, {XB + 4096 * p}")
        e(f"  s_add_u32 s53, s5, {4096 * p}")
        e(f"  buffer_load_dwordx4 v28, s[8:11], s53 offen lds")
        if lab:
            e(f"{lab}:")

def kernel1():
    e(f"attn_kernel:")
    e("  s_cmp_ge_u32 s2, 256")
    e("  s_cbranch_scc1 L_k1_end")
    if "stamp" in MODE:
        e("  s_memrealtime s[96:97]")
    e("  s_load_dwordx8 s[32:39], s[0:1], 0")
    e("  s_load_dwordx8 s[40:47], s[0:1], 40")
    e("  s_load_dwordx2 s[48:49], s[0:1], 96")
    e("  s_load_dwordx2 s[56:57], s[0:1], 32")
    e("  s_load_dwordx2 s[58:59], s[0:1], 72")
    e("  s_lshr_b32 s28, s2, 7")
    e("  s_lshr_b32 s29, s2, 4")
    e("  s_and_b32 s29, s29, 7")
    e("  s_and_b32 s30, s2, 15")
    e("  v_lshrrev_b32 v1, 6, v0")
    e("  s_nop 0")
    e("  v_readfirstlane_b32 s3, v1")
    e("  v_and_b32 v1, 63, v0")
    e("  s_waitcnt lgkmcnt(0)")
    e("  s_cmp_eq_u32 s28, 0")
    for i in range(8):
        e(f"  s_cselect_b32 s{32 + i}, s{32 + i}, s{40 + i}")
    e("  s_mul_i32 s4, s29, 129024")
    e("  s_add_u32 s8, s32, s4")
    e("  s_addc_u32 s9, s33, 0")
    e("  s_and_b32 s9, s9, 0xffff")
    e("  s_mov_b32 s10, 129024")
    e("  s_mov_b32 s11, 0x00020000")
    e("  s_lshl_b32 s4, s30, 9")
    e("  s_add_u32 s12, s38, s4")
    e("  s_addc_u32 s13, s39, 0")
    e("  s_and_b32 s13, s13, 0xffff")
    e(f"  s_sub_u32 s14, {448 * 8192}, s4")
    e("  s_mov_b32 s15, 0x00020000")
    e("  s_lshl_b32 s4, s29, 4")
    e("  s_add_u32 s4, s4, s30")
    e("  s_lshr_b32 s5, s4, 14")
    e("  s_lshl_b32 s4, s4, 18")
    e("  s_add_u32 s16, s34, s4")
    e("  s_addc_u32 s17, s35, s5")
    e("  s_and_b32 s17, s17, 0xffff")
    e("  s_mov_b32 s18, 262144")
    e("  s_mov_b32 s19, 0x00020000")
    e("  s_add_u32 s20, s36, s4")
    e("  s_addc_u32 s21, s37, s5")
    e("  s_and_b32 s21, s21, 0xffff")
    e("  s_mov_b32 s22, 262144")
    e("  s_mov_b32 s23, 0x00020000")
    e("  s_mov_b32 s24, s48")
    e("  s_and_b32 s25, s49, 0xffff")
    e(f"  s_mov_b32 s26, {2 * 1152 * 8192}")
    e("  s_mov_b32 s27, 0x00020000")
    e("  s_mov_b32 s51, 0x3db8aa3b")
    e("  s_mov_b32 s52, 0x41000000")
    e("  s_cmp_eq_u32 s3, 3")
    e("  s_cbranch_scc1 L_loader")
    e("  v_and_b32 v6, 15, v1")
    e("  v_lshrrev_b32 v7, 4, v1")
    e("  v_and_b32 v9, 7, v6")
    e("  v_lshlrev_b32 v9, 1, v9")
    e("  v_xor_b32 v9, v9, v7")
    e("  v_lshlrev_b32 v9, 4, v9")
    e("  v_lshl_add_u32 v2, v6, 9, v9")
    e("  v_lshrrev_b32 v8, 2, v1")
    e("  v_and_b32 v9, 7, v8")
    e("  v_lshlrev_b32 v9, 1, v9")
    e("  v_bfe_u32 v6, v1, 1, 1")
    e("  v_xor_b32 v6, v6, v9")
    e("  v_lshlrev_b32 v6, 4, v6")
    e("  v_lshl_add_u32 v3, v8, 9, v6")
    e("  v_and_b32 v6, 1, v1")
    e("  v_lshl_add_u32 v3, v6, 3, v3")
    e("  v_and_b32 v6, 3, v1")
    e("  v_xor_b32 v6, v6, v9")
    e("  v_lshlrev_b32 v6, 4, v6")
    e("  v_lshl_add_u32 v4, v8, 9, v6")

    e(f"  s_mul_i32 s6, s3, {CP}")
    e(f"  s_lshl_b32 s50, s6, 10")
    e("  s_lshl_b32 s6, s6, 1")
    e("  v_lshrrev_b32 v8, 5, v1")
    e("  v_add_u32 v8, s6, v8")
    e("  v_and_b32 v9, 31, v1")
    for i in range(CP):
        e(f"  v_add_u32 v6, {2 * i}, v8")
        e(f"  v_and_b32 v7, 7, v6")
        e(f"  v_lshlrev_b32 v7, 1, v7")
        e(f"  v_xor_b32 v7, v7, v9")
        e(f"  v_lshlrev_b32 v7, 4, v7")
        e(f"  v_lshl_add_u32 v{248 + i}, v6, 9, v7")
        e(f"  v_lshl_add_u32 v{248 + CP + i}, v6, 13, v7")
    def cpieces(n):
        kind, t = TILES[n]
        sbase = (n % NSLOT) * SLOT
        out = []
        if "nodma" in MODE and kind != "W" and n >= 20:
            return out
        for i in range(CP):
            if kind == "W":
                srd, so, v, nt = 12, 32 * t * 8192, 248 + CP + i, ""
            else:
                srd, so, v, nt = (16 if kind == "K" else 20), t * 16384, 248 + i, " nt"
            out += [f"s_add_u32 m0, s50, {sbase + 1024 * i}", f"s_mov_b32 s53, {so}",
                    f"buffer_load_dwordx4 v{v}, s[{srd}:{srd + 3}], s53 offen{nt} lds"]
        return out
    xpieces()
    for n in range(2):
        for x in cpieces(n):
            e("  " + x)
    e(f"  s_waitcnt vmcnt({2 * CP})")
    e("  s_barrier")
    e("  v_and_b32 v6, 15, v1")
    e("  v_lshrrev_b32 v7, 4, v1")
    e("  s_mul_i32 s5, s3, 48")
    e("  v_add_u32 v8, s5, v6")
    e("  v_mul_u32_u24 v8, 896, v8")
    e("  v_lshl_add_u32 v8, v7, 3, v8")
    e(f"  v_add_u32 v8, {XB}, v8")
    cnt = 0
    for rt in range(3):
        for ks in range(14):
            r = xreg(rt, ks)
            e(f"  ds_read_b64 v[{r}:{r + 1}], v8 offset:{rt * 16 * 896 + 64 * ks}")
            e(f"  ds_read_b64 v[{r + 2}:{r + 3}], v8 offset:{rt * 16 * 896 + 64 * ks + 32}")
            cnt += 2
            if cnt % 14 == 0:
                e("  s_waitcnt lgkmcnt(6)")
    e("  s_waitcnt lgkmcnt(0)")
    e("  s_barrier")
    for n in range(2, PD):
        for x in cpieces(n):
            e("  " + x)
    frags = []
    atmp = [6, 7, 8, 9]
    ac = [0]
    def nexta():
        ac[0] += 1
        return atmp[ac[0] % 4]
    for n, (kind, t) in enumerate(TILES):
        sbase = (n % NSLOT) * SLOT
        for f in range(16):
            fr = dict(pre=[], reads=[], mf=[], post=[], phase=n)
            if f == 0:
                last = min(n + PD - 1, NT - 1)
                fr["pre"].append(f"s_waitcnt vmcnt({CP * (last - n)})")
                fr["pre"].append("s_barrier")
                if n + PD < NT:
                    fr["pre"] += cpieces(n + PD)
                a0 = {"W": 4, "K": 2, "V": 3}[kind]
                fr["pre"].append(f"v_add_u32 v5, {sbase}, v{a0}")
            if kind == "W":
                s, hb = f >> 1, f & 1
                if hb == 0:
                    a = nexta(); cur = a
                    fr["pre"].append(f"v_xor_b32 v{a}, {(s & 3) << 6}, v5")
                a = cur
                off = 256 * (s >> 2) + 8 * hb
                fr["reads"] = [f"ds_read_b64_tr_b16 a[{{fb}}:{{fb1}}], v{a} offset:{off}",
                               f"ds_read_b64_tr_b16 a[{{fb2}}:{{fb3}}], v{a} offset:{off + 8192}"]
                for rt in range(3):
                    d = 64 * rt + 4 * f
                    c = "0" if t == 0 else f"a[{d}:{d + 3}]"
                    b = xreg(rt, t)
                    fr["mf"].append(f"v_mfma_f32_16x16x32_bf16 a[{d}:{d + 3}], a[{{fb}}:{{fb3}}], v[{b}:{b + 3}], {c}")
            elif kind == "V":
                a = nexta()
                fr["pre"].append(f"v_xor_b32 v{a}, {(f & 7) << 5}, v5")
                off = 256 * (f >> 3)
                fr["reads"] = [f"ds_read_b64_tr_b16 a[{{fb}}:{{fb1}}], v{a} offset:{off}",
                               f"ds_read_b64_tr_b16 a[{{fb2}}:{{fb3}}], v{a} offset:{off + 8192}"]
                for rt in range(3):
                    d = 64 * rt + 4 * f
                    c = "0" if t == 0 else f"a[{d}:{d + 3}]"
                    b = PR + 8 * rt + 4 * (t & 1)
                    fr["mf"].append(f"v_mfma_f32_16x16x32_bf16 a[{d}:{d + 3}], a[{{fb}}:{{fb3}}], v[{b}:{b + 3}], {c}")
            else:
                s, tl = f >> 1, f & 1
                if tl == 0:
                    a = nexta(); cur = a
                    fr["pre"].append(f"v_xor_b32 v{a}, {(s & 3) << 6}, v5")
                a = cur
                off = 256 * (s >> 2) + 8192 * tl
                fr["reads"] = [f"ds_read_b128 a[{{fb}}:{{fb3}}], v{a} offset:{off}"]
                ch = t >> 1
                for rt in range(3):
                    d = SR + 48 * (ch & 1) + 16 * rt + 4 * (2 * (t & 1) + tl)
                    c = "0" if s == 0 else f"v[{d}:{d + 3}]"
                    q = QR + 32 * rt + 4 * s
                    fr["mf"].append(f"v_mfma_f32_16x16x32_bf16 v[{d}:{d + 3}], a[{{fb}}:{{fb3}}], v[{q}:{q + 3}], {c}")
            frags.append(fr)
    N = len(frags)
    post = ["s_nop 7", "s_nop 1"]
    for rt in range(3):
        for s in range(8):
            for q in range(4):
                a = 64 * rt + 8 * s + 2 * q
                post += [f"v_accvgpr_read_b32 v{VT}, a{a}", f"v_accvgpr_read_b32 v{VT+1}, a{a+1}",
                         f"v_cvt_pk_bf16_f32 v{QR + 32*rt + 4*s + q}, v{VT}, v{VT+1}"]
    post += ["s_nop 1"]
    frags[14 * 16 - 1]["post"] = post
    rare = []
    fillers = {}
    tidx = {tk: n for n, tk in enumerate(TILES)}
    for c in range(8):
        F = softmax_fillers(c, rare)
        if c < 7:
            p0 = tidx[("K", 2 * c + 2)]
            h = len(F) // 2
            fillers[p0] = F[:h]
            fillers[p0 + 1] = F[h:]
        else:
            frags[(tidx[("V", 13)] + 1) * 16 - 1]["post"] = ["s_nop 7"] + F + ["s_nop 1"]

    def fmt(s, i):
        fb = FBA + 4 * (i % 8)
        return s.format(fb=fb, fb1=fb + 1, fb2=fb + 2, fb3=fb + 3)
    stamps = []
    def stamp():
        if "stamp" not in MODE:
            return
        k = len(stamps)
        stamps.append(k)
        e("  s_memtime s[60:61]")
        e("  s_waitcnt lgkmcnt(0)")
        e(f"  s_mov_b32 s{64 + k}, s60")
        if k == 0:
            e("  s_memrealtime s[60:61]")
            e("  s_waitcnt lgkmcnt(0)")
            e(f"  s_mov_b32 s98, s60")
    def issue_reads(i):
        if i % 32 == 0 or i == 14 * 16:
            stamp()
        for x in frags[i]["pre"]:
            e("  " + x)
        for x in frags[i]["reads"]:
            e("  " + fmt(x, i))
    stamp()

    for i in range(LOOK):
        issue_reads(i)
    for i in range(N):
        out = sum(len(frags[k]["reads"]) for k in range(i + 1, min(i + LOOK, N)))
        e(f"  s_waitcnt lgkmcnt({out})")
        ph = frags[i]["phase"]
        F = fillers.get(ph, [])
        fi = i % 16
        side = []
        if i + LOOK < N:
            j = i + LOOK
            if "stamp" in MODE and (j % 32 == 0 or j == 14 * 16):
                side.append("@stamp")
            side += list(frags[j]["pre"]) + [fmt(x, j) for x in frags[j]["reads"]]
        ns = len(side)
        for mi, m in enumerate(frags[i]["mf"]):
            if "nocompute" not in MODE:
                e("  " + fmt(m, i))
            for x in side[mi * ns // 3:(mi + 1) * ns // 3]:
                if x == "@stamp":
                    stamp()
                else:
                    e("  " + x)
            k = fi * 3 + mi
            if F and k >= 3:
                lo = (k - 3) * len(F) // 45
                hi = (k - 2) * len(F) // 45
                for x in F[lo:hi]:
                    e("  " + x)
        for x in frags[i]["post"]:
            e("  " + x)
    e("  s_nop 7")
    e("  s_nop 1")
    for rt in range(3):
        l = VL + rt
        e(f"  v_mov_b32 v{VT}, v{l}")
        e("  s_nop 1")
        e(f"  v_permlane32_swap_b32 v{l}, v{VT}")
        e(f"  v_add_f32 v{l}, v{l}, v{VT}")
        e(f"  v_mov_b32 v{VT}, v{l}")
        e("  s_nop 1")
        e(f"  v_permlane16_swap_b32 v{l}, v{VT}")
        e(f"  v_add_f32 v{l}, v{l}, v{VT}")
        e(f"  v_rcp_f32 v{l}, v{l}")
    e("  s_barrier")
    e("  s_mul_i32 s4, s3, 25344")
    e("  v_and_b32 v9, 15, v1")
    e("  v_mul_u32_u24 v9, 528, v9")
    e("  v_lshrrev_b32 v8, 4, v1")
    e("  v_lshl_add_u32 v9, v8, 3, v9")
    e("  v_add_u32 v9, s4, v9")
    k = 0
    for rt in range(3):
        for t in range(16):
            a = 64 * rt + 4 * t
            tb = 128 + 8 * (k % 8); k += 1
            for r in range(4):
                e(f"  v_accvgpr_read_b32 v{tb + r}, a{a + r}")
            for r in range(4):
                e(f"  v_mul_f32 v{tb + r}, v{VL + rt}, v{tb + r}")
            e(f"  v_cvt_pk_bf16_f32 v{tb + 4}, v{tb}, v{tb + 1}")
            e(f"  v_cvt_pk_bf16_f32 v{tb + 5}, v{tb + 2}, v{tb + 3}")
            e(f"  ds_write_b64 v9, v[{tb + 4}:{tb + 5}] offset:{rt * 16 * 528 + 32 * t}")
    e("  v_lshrrev_b32 v8, 5, v1")
    e("  v_and_b32 v7, 31, v1")
    e("  v_mul_u32_u24 v9, 528, v8")
    e("  v_lshl_add_u32 v9, v7, 4, v9")
    e("  v_add_u32 v9, s4, v9")
    e("  s_lshl_b32 s4, s28, 4")
    e("  s_add_u32 s4, s4, s30")
    e("  s_mul_i32 s4, s4, 1152")
    e("  s_mul_i32 s5, s29, 144")
    e("  s_add_u32 s4, s4, s5")
    e("  s_mul_i32 s5, s3, 48")
    e("  s_add_u32 s4, s4, s5")
    e("  s_lshl_b32 s4, s4, 9")
    e("  v_lshlrev_b32 v8, 9, v8")
    e("  v_lshl_add_u32 v8, v7, 4, v8")
    e("  s_waitcnt lgkmcnt(0)")
    for hh in range(2):
        for i in range(12 * hh, 12 * hh + 12):
            e(f"  ds_read_b128 v[{32 + 4 * i}:{35 + 4 * i}], v9 offset:{2 * i * 528}")
        for i in range(12 * hh, 12 * hh + 12):
            e(f"  s_waitcnt lgkmcnt({12 * hh + 11 - i})")
            e(f"  s_add_u32 s5, s4, {1024 * i}")
            e(f"  buffer_store_dwordx4 v[{32 + 4 * i}:{35 + 4 * i}], v8, s[24:27], s5 offen{' nt' if 'ostnt' in MODE else ''}")
    if "stamp" in MODE:
        stamp()
        e("  s_memrealtime s[60:61]")
        e("  s_waitcnt lgkmcnt(0)")
        e("  s_sub_u32 s60, s60, s98")
        e(f"  s_add_u32 s{64 + len(stamps)}, s60, s64")
        stamps.append(len(stamps))
        e("  s_memrealtime s[60:61]")
        e("  s_waitcnt lgkmcnt(0)")
        e(f"  s_mov_b32 s{64 + len(stamps)}, s96")
        stamps.append(len(stamps))
        e(f"  s_mov_b32 s{64 + len(stamps)}, s98")
        stamps.append(len(stamps))
        e(f"  s_mov_b32 s{64 + len(stamps)}, s60")
        stamps.append(len(stamps))
        e("  s_lshl_b32 s4, s2, 2")
        e("  s_add_u32 s4, s4, s3")
        e("  s_lshl_b32 s4, s4, 8")
        e(f"  s_add_u32 s4, s4, {2 * 1152 * 8192}")
        e(f"  s_mov_b32 s26, {2 * 1152 * 8192 + 1024 * 256}")
        for k in stamps:
            e(f"  v_mov_b32 v20, s{64 + k}")
            e(f"  v_mov_b32 v21, 0")
            e(f"  buffer_store_dword v20, v21, s[24:27], s4 offen offset:{4 * k}")
    e("  s_endpgm")
    for lr in rare:
        rare_block(lr)
    e("L_loader:")
    e("  v_lshrrev_b32 v10, 5, v1")
    e("  v_and_b32 v11, 31, v1")
    for j in range(4):
        e(f"  v_add_u32 v12, {2 * j}, v10")
        e(f"  v_lshlrev_b32 v13, 1, v12")
        if "noswz" in MODE:
            e(f"  v_mov_b32 v13, v11")
        else:
            e(f"  v_xor_b32 v13, v13, v11")
        e(f"  v_lshlrev_b32 v13, 4, v13")
        e(f"  v_lshl_add_u32 v{2 + j}, v12, 9, v13")
        e(f"  v_lshl_add_u32 v{6 + j}, v12, 13, v13")
    def issue(n):
        kind, t = TILES[n]
        sbase = (n % NSLOT) * SLOT
        if "nodma" in MODE and kind != "W" and n >= 20:
            return
        for j in range(3 * CP, 16):
            if kind == "W":
                srd, so, v = 12, (32 * t + 8 * (j >> 2)) * 8192, 6 + (j & 3)
            else:
                srd, so, v = (16 if kind == "K" else 20), t * 16384 + (j >> 2) * 4096, 2 + (j & 3)
            e(f"  s_mov_b32 m0, {sbase + 1024 * j}")
            e(f"  s_mov_b32 s53, {so}")
            nt = " nt" if (kind != "W" and "nont" not in MODE) else ""
            e(f"  buffer_load_dwordx4 v{v}, s[{srd}:{srd + 3}], s53 offen{nt} lds")
    xpieces()
    for n in range(2):
        issue(n)
    e(f"  s_waitcnt vmcnt({2 * (16 - 3 * CP)})")
    e("  s_barrier")
    e("  s_barrier")
    for n in range(2, PD):
        issue(n)
    for n in range(NT):
        last = min(n + PD - 1, NT - 1)
        e(f"  s_waitcnt vmcnt({min((16 - 3 * CP) * (last - n), 56)})")
        e("  s_barrier")
        if n + PD < NT:
            issue(n + PD)
    e("  s_cmp_eq_u32 s28, 0")
    e("  s_cselect_b32 s56, s56, s58")
    e("  s_cselect_b32 s57, s57, s59")
    e("  s_mov_b32 s60, s56")
    e("  s_and_b32 s61, s57, 0xffff")
    e(f"  s_mov_b32 s62, {4096 * 896}")
    e("  s_mov_b32 s63, 0x00020000")
    e(f"  s_mov_b32 s26, {WW + 2 * 7 * 4096 * 128}")
    e("  s_lshl_b32 s4, s30, 8")
    e("  s_lshl_b32 s5, s29, 5")
    e("  s_add_u32 s4, s4, s5")
    e("  s_mul_i32 s5, s4, 896")
    e("  s_mul_i32 s6, s28, 7 * 4096")
    e("  s_add_u32 s6, s6, s4")
    e("  s_lshl_b32 s6, s6, 7")
    e(f"  s_add_u32 s6, s6, {WW}")
    e("  v_lshlrev_b32 v2, 4, v1")
    e("  v_lshrrev_b32 v3, 3, v1")
    e("  v_lshlrev_b32 v3, 19, v3")
    e("  v_and_b32 v4, 7, v1")
    e("  v_lshl_add_u32 v3, v4, 4, v3")
    e("  s_mov_b32 exec_lo, -1")
    e("  s_mov_b32 exec_hi, 0x00ffffff")
    for r in range(32):
        e(f"  s_add_u32 s53, s5, {r * 896}")
        e(f"  buffer_load_dwordx4 v[{16 + 4 * r}:{19 + 4 * r}], v2, s[60:63], s53 offen")
    for r in range(32):
        e(f"  s_waitcnt vmcnt({31})")
        e(f"  s_add_u32 s53, s6, {r * 128}")
        e(f"  buffer_store_dwordx4 v[{16 + 4 * r}:{19 + 4 * r}], v3, s[24:27], s53 offen")
    e("  s_mov_b64 exec, -1")
    e("  s_barrier")
    e("L_k1_end:")
    e("  s_endpgm")

def kernel2():
    NS2 = 5; SL2 = 32768; PD2 = 4; NSUB = 32
    ACC2 = 64
    AF = 16
    BFr = 32
    e(".p2align 8")
    e("oproj_kernel:")
    e("  s_cmp_ge_u32 s2, 252")
    e("  s_cbranch_scc1 L_k2_end")
    if "k2stamp" in MODE:
        e("  s_memrealtime s[96:97]")
    e("  s_load_dwordx2 s[32:33], s[0:1], 32")
    e("  s_load_dwordx2 s[34:35], s[0:1], 72")
    e("  s_load_dwordx2 s[36:37], s[0:1], 80")
    e("  s_load_dwordx2 s[38:39], s[0:1], 96")
    e("  s_and_b32 s4, s2, 7")
    e("  s_lshr_b32 s5, s2, 3")
    e("  s_lshl_b32 s6, s4, 5")
    e("  s_mul_i32 s7, s4, 31")
    e("  s_add_u32 s7, s7, 4")
    e("  s_cmp_lt_u32 s4, 4")
    e("  s_cselect_b32 s6, s6, s7")
    e("  s_add_u32 s6, s6, s5")
    e("  s_cmp_ge_u32 s6, 126")
    e("  s_cselect_b32 s28, 1, 0")
    e("  s_mul_i32 s4, s28, 126")
    e("  s_sub_u32 s4, s6, s4")
    e("  s_mul_i32 s29, s4, 9363")
    e("  s_lshr_b32 s29, s29, 16")
    e("  s_mul_i32 s5, s29, 7")
    e("  s_sub_u32 s30, s4, s5")
    e("  v_lshrrev_b32 v1, 6, v0")
    e("  s_nop 0")
    e("  v_readfirstlane_b32 s3, v1")
    e("  v_and_b32 v1, 63, v0")
    e("  s_waitcnt lgkmcnt(0)")
    e("  s_cmp_eq_u32 s28, 0")
    e("  s_cselect_b32 s32, s32, s34")
    e("  s_cselect_b32 s33, s33, s35")
    e("  s_mov_b32 s12, s38")
    e("  s_and_b32 s13, s39, 0xffff")
    e(f"  s_mov_b32 s14, {WW + 2 * 7 * 4096 * 128}")
    e("  s_mov_b32 s15, 0x00020000")
    e("  s_mov_b32 s16, s36")
    e("  s_and_b32 s17, s37, 0xffff")
    e(f"  s_mov_b32 s18, {1152 * 1792}")
    e("  s_mov_b32 s19, 0x00020000")
    e("  s_lshl_b32 s50, s3, 11")
    e("  s_and_b32 s40, s3, 3")
    e("  s_lshr_b32 s41, s3, 2")
    e("  v_and_b32 v9, 15, v1")
    e("  v_lshrrev_b32 v10, 4, v1")
    e("  v_lshrrev_b32 v11, 3, v1")
    e("  v_bfe_u32 v12, v11, 1, 1")
    e("  v_lshlrev_b32 v12, 1, v12")
    e("  v_and_b32 v13, 7, v1")
    e("  v_xor_b32 v12, v12, v13")
    e("  v_lshlrev_b32 v12, 4, v12")
    e("  s_lshl_b32 s5, s3, 4")
    e("  v_add_u32 v11, s5, v11")
    e("  v_lshlrev_b32 v11, 7, v11")
    e("  v_add_u32 v2, v11, v12")
    e("  s_mul_i32 s5, s28, 7")
    e("  s_add_u32 s5, s5, s30")
    e("  s_lshl_b32 s5, s5, 19")
    e(f"  s_add_u32 s5, s5, {WW}")
    e("  v_add_u32 v2, s5, v2")
    e("  v_xor_b32 v3, 64, v2")
    e(f"  v_add_u32 v3, {8 * 128}, v3")
    e("  v_lshlrev_b32 v12, 1, v10")
    e("  v_xor_b32 v12, v12, v9")
    e("  v_lshlrev_b32 v12, 4, v12")
    e("  s_lshl_b32 s4, s28, 4")
    e("  s_mul_i32 s4, s4, 1152")
    e("  s_lshl_b32 s5, s29, 6")
    e("  s_add_u32 s4, s4, s5")
    e("  s_lshl_b32 s5, s3, 3")
    e("  s_add_u32 s4, s4, s5")
    e("  v_add_u32 v11, s4, v10")
    e("  v_lshlrev_b32 v11, 9, v11")
    e("  v_add_u32 v4, v11, v12")
    e("  v_xor_b32 v5, 128, v4")
    e(f"  v_add_u32 v5, {4 * 512}, v5")
    e("  v_bfe_u32 v11, v1, 2, 2")
    e("  v_lshl_add_u32 v11, v10, 3, v11")
    e("  s_lshl_b32 s5, s40, 5")
    e("  v_add_u32 v11, s5, v11")
    e("  v_bfe_u32 v12, v1, 3, 1")
    e("  v_bfe_u32 v13, v1, 4, 1")
    e("  v_lshl_add_u32 v12, v13, 1, v12")
    e("  v_lshlrev_b32 v12, 1, v12")
    e("  v_bfe_u32 v13, v1, 1, 1")
    e("  v_or_b32 v12, v12, v13")
    e("  v_lshlrev_b32 v12, 4, v12")
    e("  v_lshl_add_u32 v6, v11, 7, v12")
    e("  v_and_b32 v13, 1, v1")
    e("  v_lshl_add_u32 v6, v13, 3, v6")
    e("  s_lshl_b32 s5, s40, 2")
    e("  v_add_u32 v12, s5, v10")
    e("  v_and_b32 v13, 7, v9")
    e("  v_lshlrev_b32 v13, 1, v13")
    e("  v_xor_b32 v12, v12, v13")
    e("  v_lshlrev_b32 v12, 4, v12")
    e("  s_lshl_b32 s5, s41, 5")
    e("  v_add_u32 v11, s5, v9")
    e("  v_lshl_add_u32 v7, v11, 8, v12")
    e("  v_add_u32 v7, 16384, v7")

    def loads(sb):
        sl = (sb % NS2) * SL2
        for j in range(2):
            e(f"  s_add_u32 m0, s50, {sl + 1024 * j}")
            e(f"  s_mov_b32 s53, {0 if 'k2now' in MODE else 128 * sb * 128}")
            e(f"  buffer_load_dwordx4 v{2 + j}, s[12:15], s53 offen{' nt' if 'k2ntw' in MODE else ''} lds")
        for j in range(2):
            e(f"  s_add_u32 m0, s50, {sl + 16384 + 1024 * j}")
            e(f"  s_mov_b32 s53, {0 if 'k2noo' in MODE else (sb >> 1) * 1152 * 512 + (sb & 1) * 256}")
            e(f"  buffer_load_dwordx4 v{4 + j}, s[12:15], s53 offen{' nt' if 'k2nto' in MODE else ''} lds")
    st2 = []
    def stamp2():
        if "k2stamp" not in MODE:
            return
        k = len(st2); st2.append(k)
        e("  s_memrealtime s[60:61]")
        e("  s_waitcnt lgkmcnt(0)")
        e(f"  s_mov_b32 s{64 + k}, s60")
    stamp2()
    for sb in range(PD2):
        loads(sb)
    for sb in range(NSUB):
        sl = (sb % NS2) * SL2
        last = min(sb + PD2 - 1, NSUB - 1)
        e(f"  s_waitcnt vmcnt({4 * (last - sb)})")
        e("  s_barrier")
        if sb % 2 == 0:
            stamp2()
        e(f"  v_add_u32 v8, {sl}, v6")
        e(f"  v_add_u32 v11, {sl}, v7")
        for mi in range(2):
            e(f"  ds_read_b128 v[{BFr + 4 * mi}:{BFr + 4 * mi + 3}], v11 offset:{16 * mi * 256}")
        for ni in range(4):
            e(f"  v_xor_b32 v{12 + ni}, {ni << 5}, v8")
            e(f"  ds_read_b64_tr_b16 v[{AF + 4 * ni}:{AF + 4 * ni + 1}], v{12 + ni}")
            e(f"  ds_read_b64_tr_b16 v[{AF + 4 * ni + 2}:{AF + 4 * ni + 3}], v{12 + ni} offset:512")
        if sb + PD2 < NSUB:
            loads(sb + PD2)
        for ni in range(4):
            e(f"  s_waitcnt lgkmcnt({2 * (3 - ni)})")
            for mi in range(2):
                d = ACC2 + 4 * (2 * ni + mi)
                c = "0" if sb == 0 else f"v[{d}:{d + 3}]"
                b = BFr + 4 * mi
                e(f"  v_mfma_f32_16x16x32_bf16 v[{d}:{d + 3}], v[{AF + 4 * ni}:{AF + 4 * ni + 3}], v[{b}:{b + 3}], {c}")
    e("  s_nop 7")
    e("  s_nop 1")
    e("  s_barrier")
    e("  v_lshlrev_b32 v5, 4, v1")
    e("  s_lshl_b32 s4, s3, 13")
    e("  v_add_u32 v5, s4, v5")
    for t in range(8):
        d = ACC2 + 4 * t
        e(f"  ds_write_b128 v5, v[{d}:{d + 3}] offset:{1024 * t}")
    e("  s_waitcnt lgkmcnt(0)")
    e("  s_barrier")
    e("  v_lshlrev_b32 v5, 4, v1")
    e("  s_lshl_b32 s4, s41, 15")
    e("  s_lshl_b32 s5, s40, 11")
    e("  s_add_u32 s4, s4, s5")
    e("  v_add_u32 v5, s4, v5")
    for tt in range(2):
        for p in range(4):
            r = 16 + 4 * p + 16 * tt
            e(f"  ds_read_b128 v[{r}:{r + 3}], v5 offset:{8192 * p + 1024 * tt}")
    e("  s_waitcnt lgkmcnt(0)")
    for tt in range(2):
        b0 = 16 + 16 * tt
        for p in range(1, 4):
            for r in range(4):
                e(f"  v_add_f32 v{b0 + r}, v{b0 + r}, v{b0 + 4 * p + r}")
    e("  s_lshl_b32 s4, s41, 5")
    e("  s_lshl_b32 s5, s29, 6")
    e("  s_add_u32 s4, s4, s5")
    e("  v_add_u32 v9, s4, v9")
    e("  v_mul_u32_u24 v9, 1792, v9")
    e("  v_lshl_add_u32 v9, v10, 3, v9")
    e("  s_mul_i32 s4, s28, 896")
    e("  s_lshl_b32 s5, s30, 7")
    e("  s_add_u32 s4, s4, s5")
    e("  s_lshl_b32 s5, s40, 5")
    e("  s_add_u32 s4, s4, s5")
    e("  v_add_u32 v9, s4, v9")
    for tt in range(2):
        b0 = 16 + 16 * tt
        e(f"  v_cvt_pk_bf16_f32 v{b0}, v{b0}, v{b0 + 1}")
        e(f"  v_cvt_pk_bf16_f32 v{b0 + 1}, v{b0 + 2}, v{b0 + 3}")
        e(f"  s_mov_b32 s53, {tt * 16 * 1792}")
        e(f"  buffer_store_dwordx2 v[{b0}:{b0 + 1}], v9, s[16:19], s53 offen")
    if "k2stamp" in MODE:
        stamp2()
        e(f"  s_mov_b32 s{64 + len(st2)}, s96")
        st2.append(len(st2))
        e("  s_lshl_b32 s4, s2, 3")
        e("  s_add_u32 s4, s4, s3")
        e("  s_lshl_b32 s4, s4, 7")
        e(f"  s_add_u32 s4, s4, {2 * 1152 * 8192}")
        e(f"  s_mov_b32 s14, {2 * 1152 * 8192 + 2048 * 128}")
        for k in st2:
            e(f"  v_mov_b32 v20, s{64 + k}")
            e(f"  v_mov_b32 v21, 0")
            e(f"  buffer_store_dword v20, v21, s[12:15], s4 offen offset:{4 * k}")
    e("L_k2_end:")
    e("  s_endpgm")

def main():
    hdr = open(f"cdna_kernels/{NAME}.s.ref").read().splitlines()
    for line in hdr:
        if line.startswith("; @launch"):
            break
        if "@launch" in line:
            continue
        e(line)
    e(f"; @launch kernel=attn_kernel grid=(256,1,1) block=(256,1,1) lds={NSLOT * SLOT}")
    e("; @launch kernel=oproj_kernel grid=(252,1,1) block=(512,1,1) lds=163840")
    e('.amdgcn_target "amdgcn-amd-amdhsa--gfx950"')
    e(".text")
    e(".globl attn_kernel")
    e(".p2align 8")
    e(".type attn_kernel,@function")
    kernel1()
    e(".globl oproj_kernel")
    e(".type oproj_kernel,@function")
    kernel2()
    e('.section .rodata,"a"')
    for name, nv, ao in (("attn_kernel", 480, 256), ("oproj_kernel", 96, 96)):
        e(".p2align 6")
        e(f".amdhsa_kernel {name}")
        e(f"  .amdhsa_next_free_vgpr {nv}")
        e("  .amdhsa_next_free_sgpr 100")
        e(f"  .amdhsa_accum_offset {ao}")
        e("  .amdhsa_group_segment_fixed_size 0")
        e("  .amdhsa_kernarg_size 104")
        e("  .amdhsa_user_sgpr_count 2")
        e("  .amdhsa_user_sgpr_kernarg_segment_ptr 1")
        e("  .amdhsa_system_sgpr_workgroup_id_x 1")
        e(".end_amdhsa_kernel")
    open(OUT, "w").write("\n".join(x for x in L if x is not None) + "\n")

main()
```

```python
import sys, os
MODE = os.environ.get("MODE", "")

NAME = "concat_heads__mha_block_cached__gqa_block_cached__near_ridge"
OUT = os.environ.get("OUT", f"cdna_kernels/{NAME}.s")

L = []
def e(s=""):
    L.append(s)

_lab = [0]
def newlabel(p="L"):
    _lab[0] += 1
    return f"{p}_{_lab[0]}"

NSLOT = int(os.environ.get("NSLOT", "10"))
SLOT = 16384
PD = NSLOT - 2
CP = int(os.environ.get("CP", "3"))
LOOK = int(os.environ.get("LOOK", "7"))
FBA = 192
QR = 32
SR = 128
PR = 224
VM = 10
VL = 13
VX = 16
VT = 19
def xreg(rt, ks):
    return 32 + 56 * rt + 4 * ks

TILES = [("W", m) for m in range(14)]
TILES += [("K", 0), ("K", 1)]
for c in range(8):
    if c < 7:
        TILES += [("K", 2 * c + 2), ("K", 2 * c + 3)]
    TILES += [("V", 2 * c), ("V", 2 * c + 1)]
NT = len(TILES)
assert NT == 46

def softmax_fillers(c, rare_blocks):
    F = []
    sb = SR + 48 * (c & 1)
    for rt in range(3):
        S = [sb + 16 * rt + i for i in range(16)]
        t = VT + 3 * rt
        x = VX + rt
        F += [f"v_max3_f32 v{t}, v{S[0]}, v{S[1]}, v{S[2]}",
              f"v_max3_f32 v{t+1}, v{S[3]}, v{S[4]}, v{S[5]}",
              f"v_max3_f32 v{t+2}, v{S[6]}, v{S[7]}, v{S[8]}",
              f"v_max3_f32 v{t}, v{t}, v{S[9]}, v{S[10]}",
              f"v_max3_f32 v{t+1}, v{t+1}, v{S[11]}, v{S[12]}",
              f"v_max3_f32 v{t+2}, v{t+2}, v{S[13]}, v{S[14]}",
              f"v_max3_f32 v{t}, v{t}, v{t+1}, v{S[15]}",
              f"v_max_f32 v{x}, v{t}, v{t+2}",
              f"v_mov_b32 v{t}, v{x}",
              "s_nop 1",
              f"v_permlane32_swap_b32 v{x}, v{t}",
              f"v_max_f32 v{x}, v{x}, v{t}",
              f"v_mov_b32 v{t}, v{x}",
              "s_nop 1",
              f"v_permlane16_swap_b32 v{x}, v{t}",
              f"v_max_f32 v{x}, v{x}, v{t}",
              f"v_mul_f32 v{x}, s51, v{x}"]
    if c == 0:
        for rt in range(3):
            F += [f"v_mov_b32 v{VM+rt}, v{VX+rt}"]
    else:
        lr = f"Lrare_{c}"
        F += [f"v_sub_f32 v{VT}, v{VX}, v{VM}",
              f"v_sub_f32 v{VT+1}, v{VX+1}, v{VM+1}",
              f"v_sub_f32 v{VT+2}, v{VX+2}, v{VM+2}",
              f"v_max3_f32 v{VT}, v{VT}, v{VT+1}, v{VT+2}",
              f"v_cmp_lt_f32 vcc, s52, v{VT}",
              f"s_cbranch_vccnz {lr}\n{lr}_ret:"]
        rare_blocks.append(lr)
    for rt in range(3):
        S = [sb + 16 * rt + i for i in range(16)]
        for i in range(16):
            F.append(f"v_fma_f32 v{S[i]}, v{S[i]}, s51, -v{VM+rt}")
        for i in range(16):
            F.append(f"v_exp_f32 v{S[i]}, v{S[i]}")
    for rt in range(3):
        S = [sb + 16 * rt + i for i in range(16)]
        t = VT + 3 * rt
        F += [f"v_add_f32 v{t}, v{S[0]}, v{S[1]}",
              f"v_add_f32 v{t+1}, v{S[2]}, v{S[3]}"]
        for i in range(4, 16, 2):
            F += [f"v_add_f32 v{t}, v{t}, v{S[i]}",
                  f"v_add_f32 v{t+1}, v{t+1}, v{S[i+1]}"]
        F += [f"v_add_f32 v{t}, v{t}, v{t+1}"]
        if c == 0:
            F += [f"v_mov_b32 v{VL+rt}, v{t}"]
        else:
            F += [f"v_add_f32 v{VL+rt}, v{VL+rt}, v{t}"]
    for rt in range(3):
        S = [sb + 16 * rt + i for i in range(16)]
        for j in range(2):
            for q in range(4):
                F.append(f"v_cvt_pk_bf16_f32 v{PR + 8*rt + 4*j + q}, v{S[8*j + 2*q]}, v{S[8*j + 2*q + 1]}")
    return F

def rare_block(lr):
    e(f"{lr}:")
    for rt in range(3):
        t = VT + 3 * rt
        e(f"  v_max_f32 v{t}, v{VM+rt}, v{VX+rt}")
        e(f"  v_sub_f32 v{t+1}, v{VM+rt}, v{t}")
        e(f"  v_exp_f32 v{t+1}, v{t+1}")
        e(f"  v_mov_b32 v{VM+rt}, v{t}")
        e(f"  v_mul_f32 v{VL+rt}, v{VL+rt}, v{t+1}")
        for i in range(64):
            a = 64 * rt + i
            e(f"  v_accvgpr_read_b32 v{t+2}, a{a}")
            e(f"  v_mul_f32 v{t+2}, v{t+2}, v{t+1}")
            e(f"  v_accvgpr_write_b32 a{a}, v{t+2}")
    e("  s_nop 1")
    e(f"  s_branch {lr}_ret")

XB = 32768
WW = 20971520
def xpieces():
    e("  v_lshlrev_b32 v28, 4, v1")
    e("  s_lshl_b32 s5, s3, 10")
    for p in range(32):
        lab = None
        if p == 31:
            lab = newlabel("Lxs")
            e("  s_cmp_ge_u32 s3, 2")
            e(f"  s_cbranch_scc1 {lab}")
        e(f"  s_add_u32 m0, s5, {XB + 4096 * p}")
        e(f"  s_add_u32 s53, s5, {4096 * p}")
        e(f"  buffer_load_dwordx4 v28, s[8:11], s53 offen lds")
        if lab:
            e(f"{lab}:")

def kernel1():
    e(f"attn_kernel:")
    e("  s_cmp_ge_u32 s2, 256")
    e("  s_cbranch_scc1 L_k1_end")
    if "stamp" in MODE:
        e("  s_memrealtime s[96:97]")
    e("  s_load_dwordx8 s[32:39], s[0:1], 0")
    e("  s_load_dwordx8 s[40:47], s[0:1], 40")
    e("  s_load_dwordx2 s[48:49], s[0:1], 96")
    e("  s_load_dwordx2 s[56:57], s[0:1], 32")
    e("  s_load_dwordx2 s[58:59], s[0:1], 72")
    e("  s_lshr_b32 s28, s2, 7")
    e("  s_lshr_b32 s29, s2, 4")
    e("  s_and_b32 s29, s29, 7")
    e("  s_and_b32 s30, s2, 15")
    e("  v_lshrrev_b32 v1, 6, v0")
    e("  s_nop 0")
    e("  v_readfirstlane_b32 s3, v1")
    e("  v_and_b32 v1, 63, v0")
    e("  s_waitcnt lgkmcnt(0)")
    e("  s_cmp_eq_u32 s28, 0")
    for i in range(8):
        e(f"  s_cselect_b32 s{32 + i}, s{32 + i}, s{40 + i}")
    e("  s_mul_i32 s4, s29, 129024")
    e("  s_add_u32 s8, s32, s4")
    e("  s_addc_u32 s9, s33, 0")
    e("  s_and_b32 s9, s9, 0xffff")
    e("  s_mov_b32 s10, 129024")
    e("  s_mov_b32 s11, 0x00020000")
    e("  s_lshl_b32 s4, s30, 9")
    e("  s_add_u32 s12, s38, s4")
    e("  s_addc_u32 s13, s39, 0")
    e("  s_and_b32 s13, s13, 0xffff")
    e(f"  s_sub_u32 s14, {448 * 8192}, s4")
    e("  s_mov_b32 s15, 0x00020000")
    e("  s_lshl_b32 s4, s29, 4")
    e("  s_add_u32 s4, s4, s30")
    e("  s_lshr_b32 s5, s4, 14")
    e("  s_lshl_b32 s4, s4, 18")
    e("  s_add_u32 s16, s34, s4")
    e("  s_addc_u32 s17, s35, s5")
    e("  s_and_b32 s17, s17, 0xffff")
    e("  s_mov_b32 s18, 262144")
    e("  s_mov_b32 s19, 0x00020000")
    e("  s_add_u32 s20, s36, s4")
    e("  s_addc_u32 s21, s37, s5")
    e("  s_and_b32 s21, s21, 0xffff")
    e("  s_mov_b32 s22, 262144")
    e("  s_mov_b32 s23, 0x00020000")
    e("  s_mov_b32 s24, s48")
    e("  s_and_b32 s25, s49, 0xffff")
    e(f"  s_mov_b32 s26, {2 * 1152 * 8192}")
    e("  s_mov_b32 s27, 0x00020000")
    e("  s_mov_b32 s51, 0x3db8aa3b")
    e("  s_mov_b32 s52, 0x41000000")
    e("  s_cmp_eq_u32 s3, 3")
    e("  s_cbranch_scc1 L_loader")
    e("  v_and_b32 v6, 15, v1")
    e("  v_lshrrev_b32 v7, 4, v1")
    e("  v_and_b32 v9, 7, v6")
    e("  v_lshlrev_b32 v9, 1, v9")
    e("  v_xor_b32 v9, v9, v7")
    e("  v_lshlrev_b32 v9, 4, v9")
    e("  v_lshl_add_u32 v2, v6, 9, v9")
    e("  v_lshrrev_b32 v8, 2, v1")
    e("  v_and_b32 v9, 7, v8")
    e("  v_lshlrev_b32 v9, 1, v9")
    e("  v_bfe_u32 v6, v1, 1, 1")
    e("  v_xor_b32 v6, v6, v9")
    e("  v_lshlrev_b32 v6, 4, v6")
    e("  v_lshl_add_u32 v3, v8, 9, v6")
    e("  v_and_b32 v6, 1, v1")
    e("  v_lshl_add_u32 v3, v6, 3, v3")
    e("  v_and_b32 v6, 3, v1")
    e("  v_xor_b32 v6, v6, v9")
    e("  v_lshlrev_b32 v6, 4, v6")
    e("  v_lshl_add_u32 v4, v8, 9, v6")

    e(f"  s_mul_i32 s6, s3, {CP}")
    e(f"  s_lshl_b32 s50, s6, 10")
    e("  s_lshl_b32 s6, s6, 1")
    e("  v_lshrrev_b32 v8, 5, v1")
    e("  v_add_u32 v8, s6, v8")
    e("  v_and_b32 v9, 31, v1")
    for i in range(CP):
        e(f"  v_add_u32 v6, {2 * i}, v8")
        e(f"  v_and_b32 v7, 7, v6")
        e(f"  v_lshlrev_b32 v7, 1, v7")
        e(f"  v_xor_b32 v7, v7, v9")
        e(f"  v_lshlrev_b32 v7, 4, v7")
        e(f"  v_lshl_add_u32 v{248 + i}, v6, 9, v7")
        e(f"  v_lshl_add_u32 v{248 + CP + i}, v6, 13, v7")
    def cpieces(n):
        kind, t = TILES[n]
        sbase = (n % NSLOT) * SLOT
        out = []
        if "nodma" in MODE and kind != "W" and n >= 20:
            return out
        for i in range(CP):
            if kind == "W":
                srd, so, v, nt = 12, 32 * t * 8192, 248 + CP + i, ""
            else:
                srd, so, v, nt = (16 if kind == "K" else 20), t * 16384, 248 + i, " nt"
            out += [f"s_add_u32 m0, s50, {sbase + 1024 * i}", f"s_mov_b32 s53, {so}",
                    f"buffer_load_dwordx4 v{v}, s[{srd}:{srd + 3}], s53 offen{nt} lds"]
        return out
    xpieces()
    for n in range(2):
        for x in cpieces(n):
            e("  " + x)
    e(f"  s_waitcnt vmcnt({2 * CP})")
    e("  s_barrier")
    e("  v_and_b32 v6, 15, v1")
    e("  v_lshrrev_b32 v7, 4, v1")
    e("  s_mul_i32 s5, s3, 48")
    e("  v_add_u32 v8, s5, v6")
    e("  v_mul_u32_u24 v8, 896, v8")
    e("  v_lshl_add_u32 v8, v7, 3, v8")
    e(f"  v_add_u32 v8, {XB}, v8")
    cnt = 0
    for rt in range(3):
        for ks in range(14):
            r = xreg(rt, ks)
            e(f"  ds_read_b64 v[{r}:{r + 1}], v8 offset:{rt * 16 * 896 + 64 * ks}")
            e(f"  ds_read_b64 v[{r + 2}:{r + 3}], v8 offset:{rt * 16 * 896 + 64 * ks + 32}")
            cnt += 2
            if cnt % 14 == 0:
                e("  s_waitcnt lgkmcnt(6)")
    e("  s_waitcnt lgkmcnt(0)")
    e("  s_barrier")
    for n in range(2, PD):
        for x in cpieces(n):
            e("  " + x)
    frags = []
    atmp = [6, 7, 8, 9]
    ac = [0]
    def nexta():
        ac[0] += 1
        return atmp[ac[0] % 4]
    for n, (kind, t) in enumerate(TILES):
        sbase = (n % NSLOT) * SLOT
        for f in range(16):
            fr = dict(pre=[], reads=[], mf=[], post=[], phase=n)
            if f == 0:
                last = min(n + PD - 1, NT - 1)
                fr["pre"].append(f"s_waitcnt vmcnt({CP * (last - n)})")
                fr["pre"].append("s_barrier")
                if n + PD < NT:
                    fr["pre"] += cpieces(n + PD)
                a0 = {"W": 4, "K": 2, "V": 3}[kind]
                fr["pre"].append(f"v_add_u32 v5, {sbase}, v{a0}")
            if kind == "W":
                s, hb = f >> 1, f & 1
                if hb == 0:
                    a = nexta(); cur = a
                    fr["pre"].append(f"v_xor_b32 v{a}, {(s & 3) << 6}, v5")
                a = cur
                off = 256 * (s >> 2) + 8 * hb
                fr["reads"] = [f"ds_read_b64_tr_b16 a[{{fb}}:{{fb1}}], v{a} offset:{off}",
                               f"ds_read_b64_tr_b16 a[{{fb2}}:{{fb3}}], v{a} offset:{off + 8192}"]
                for rt in range(3):
                    d = 64 * rt + 4 * f
                    c = "0" if t == 0 else f"a[{d}:{d + 3}]"
                    b = xreg(rt, t)
                    fr["mf"].append(f"v_mfma_f32_16x16x32_bf16 a[{d}:{d + 3}], a[{{fb}}:{{fb3}}], v[{b}:{b + 3}], {c}")
            elif kind == "V":
                a = nexta()
                fr["pre"].append(f"v_xor_b32 v{a}, {(f & 7) << 5}, v5")
                off = 256 * (f >> 3)
                fr["reads"] = [f"ds_read_b64_tr_b16 a[{{fb}}:{{fb1}}], v{a} offset:{off}",
                               f"ds_read_b64_tr_b16 a[{{fb2}}:{{fb3}}], v{a} offset:{off + 8192}"]
                for rt in range(3):
                    d = 64 * rt + 4 * f
                    c = "0" if t == 0 else f"a[{d}:{d + 3}]"
                    b = PR + 8 * rt + 4 * (t & 1)
                    fr["mf"].append(f"v_mfma_f32_16x16x32_bf16 a[{d}:{d + 3}], a[{{fb}}:{{fb3}}], v[{b}:{b + 3}], {c}")
            else:
                s, tl = f >> 1, f & 1
                if tl == 0:
                    a = nexta(); cur = a
                    fr["pre"].append(f"v_xor_b32 v{a}, {(s & 3) << 6}, v5")
                a = cur
                off = 256 * (s >> 2) + 8192 * tl
                fr["reads"] = [f"ds_read_b128 a[{{fb}}:{{fb3}}], v{a} offset:{off}"]
                ch = t >> 1
                for rt in range(3):
                    d = SR + 48 * (ch & 1) + 16 * rt + 4 * (2 * (t & 1) + tl)
                    c = "0" if s == 0 else f"v[{d}:{d + 3}]"
                    q = QR + 32 * rt + 4 * s
                    fr["mf"].append(f"v_mfma_f32_16x16x32_bf16 v[{d}:{d + 3}], a[{{fb}}:{{fb3}}], v[{q}:{q + 3}], {c}")
            frags.append(fr)
    N = len(frags)
    post = ["s_nop 7", "s_nop 1"]
    for rt in range(3):
        for s in range(8):
            for q in range(4):
                a = 64 * rt + 8 * s + 2 * q
                post += [f"v_accvgpr_read_b32 v{VT}, a{a}", f"v_accvgpr_read_b32 v{VT+1}, a{a+1}",
                         f"v_cvt_pk_bf16_f32 v{QR + 32*rt + 4*s + q}, v{VT}, v{VT+1}"]
    post += ["s_nop 1"]
    frags[14 * 16 - 1]["post"] = post
    rare = []
    fillers = {}
    tidx = {tk: n for n, tk in enumerate(TILES)}
    for c in range(8):
        F = softmax_fillers(c, rare)
        if c < 7:
            p0 = tidx[("K", 2 * c + 2)]
            h = len(F) // 2
            fillers[p0] = F[:h]
            fillers[p0 + 1] = F[h:]
        else:
            frags[(tidx[("V", 13)] + 1) * 16 - 1]["post"] = ["s_nop 7"] + F + ["s_nop 1"]

    def fmt(s, i):
        fb = FBA + 4 * (i % 8)
        return s.format(fb=fb, fb1=fb + 1, fb2=fb + 2, fb3=fb + 3)
    stamps = []
    def stamp():
        if "stamp" not in MODE:
            return
        k = len(stamps)
        stamps.append(k)
        e("  s_memtime s[60:61]")
        e("  s_waitcnt lgkmcnt(0)")
        e(f"  s_mov_b32 s{64 + k}, s60")
        if k == 0:
            e("  s_memrealtime s[60:61]")
            e("  s_waitcnt lgkmcnt(0)")
            e(f"  s_mov_b32 s98, s60")
    def issue_reads(i):
        if i % 32 == 0 or i == 14 * 16:
            stamp()
        for x in frags[i]["pre"]:
            e("  " + x)
        for x in frags[i]["reads"]:
            e("  " + fmt(x, i))
    stamp()

    for i in range(LOOK):
        issue_reads(i)
    for i in range(N):
        out = sum(len(frags[k]["reads"]) for k in range(i + 1, min(i + LOOK, N)))
        e(f"  s_waitcnt lgkmcnt({out})")
        ph = frags[i]["phase"]
        F = fillers.get(ph, [])
        fi = i % 16
        side = []
        if i + LOOK < N:
            j = i + LOOK
            if "stamp" in MODE and (j % 32 == 0 or j == 14 * 16):
                side.append("@stamp")
            side += list(frags[j]["pre"]) + [fmt(x, j) for x in frags[j]["reads"]]
        ns = len(side)
        for mi, m in enumerate(frags[i]["mf"]):
            if "nocompute" not in MODE:
                e("  " + fmt(m, i))
            for x in side[mi * ns // 3:(mi + 1) * ns // 3]:
                if x == "@stamp":
                    stamp()
                else:
                    e("  " + x)
            k = fi * 3 + mi
            if F and k >= 3:
                lo = (k - 3) * len(F) // 45
                hi = (k - 2) * len(F) // 45
                for x in F[lo:hi]:
                    e("  " + x)
        for x in frags[i]["post"]:
            e("  " + x)
    e("  s_nop 7")
    e("  s_nop 1")
    for rt in range(3):
        l = VL + rt
        e(f"  v_mov_b32 v{VT}, v{l}")
        e("  s_nop 1")
        e(f"  v_permlane32_swap_b32 v{l}, v{VT}")
        e(f"  v_add_f32 v{l}, v{l}, v{VT}")
        e(f"  v_mov_b32 v{VT}, v{l}")
        e("  s_nop 1")
        e(f"  v_permlane16_swap_b32 v{l}, v{VT}")
        e(f"  v_add_f32 v{l}, v{l}, v{VT}")
        e(f"  v_rcp_f32 v{l}, v{l}")
    e("  s_barrier")
    e("  s_mul_i32 s4, s3, 25344")
    e("  v_and_b32 v9, 15, v1")
    e("  v_mul_u32_u24 v9, 528, v9")
    e("  v_lshrrev_b32 v8, 4, v1")
    e("  v_lshl_add_u32 v9, v8, 3, v9")
    e("  v_add_u32 v9, s4, v9")
    k = 0
    for rt in range(3):
        for t in range(16):
            a = 64 * rt + 4 * t
            tb = 128 + 8 * (k % 8); k += 1
            for r in range(4):
                e(f"  v_accvgpr_read_b32 v{tb + r}, a{a + r}")
            for r in range(4):
                e(f"  v_mul_f32 v{tb + r}, v{VL + rt}, v{tb + r}")
            e(f"  v_cvt_pk_bf16_f32 v{tb + 4}, v{tb}, v{tb + 1}")
            e(f"  v_cvt_pk_bf16_f32 v{tb + 5}, v{tb + 2}, v{tb + 3}")
            e(f"  ds_write_b64 v9, v[{tb + 4}:{tb + 5}] offset:{rt * 16 * 528 + 32 * t}")
    e("  v_lshrrev_b32 v8, 5, v1")
    e("  v_and_b32 v7, 31, v1")
    e("  v_mul_u32_u24 v9, 528, v8")
    e("  v_lshl_add_u32 v9, v7, 4, v9")
    e("  v_add_u32 v9, s4, v9")
    e("  s_lshl_b32 s4, s28, 4")
    e("  s_add_u32 s4, s4, s30")
    e("  s_mul_i32 s4, s4, 1152")
    e("  s_mul_i32 s5, s29, 144")
    e("  s_add_u32 s4, s4, s5")
    e("  s_mul_i32 s5, s3, 48")
    e("  s_add_u32 s4, s4, s5")
    e("  s_lshl_b32 s4, s4, 9")
    e("  v_lshlrev_b32 v8, 9, v8")
    e("  v_lshl_add_u32 v8, v7, 4, v8")
    e("  s_waitcnt lgkmcnt(0)")
    for hh in range(2):
        for i in range(12 * hh, 12 * hh + 12):
            e(f"  ds_read_b128 v[{32 + 4 * i}:{35 + 4 * i}], v9 offset:{2 * i * 528}")
        for i in range(12 * hh, 12 * hh + 12):
            e(f"  s_waitcnt lgkmcnt({12 * hh + 11 - i})")
            e(f"  s_add_u32 s5, s4, {1024 * i}")
            e(f"  buffer_store_dwordx4 v[{32 + 4 * i}:{35 + 4 * i}], v8, s[24:27], s5 offen{' nt' if 'ostnt' in MODE else ''}")
    if "stamp" in MODE:
        stamp()
        e("  s_memrealtime s[60:61]")
        e("  s_waitcnt lgkmcnt(0)")
        e("  s_sub_u32 s60, s60, s98")
        e(f"  s_add_u32 s{64 + len(stamps)}, s60, s64")
        stamps.append(len(stamps))
        e("  s_memrealtime s[60:61]")
        e("  s_waitcnt lgkmcnt(0)")
        e(f"  s_mov_b32 s{64 + len(stamps)}, s96")
        stamps.append(len(stamps))
        e(f"  s_mov_b32 s{64 + len(stamps)}, s98")
        stamps.append(len(stamps))
        e(f"  s_mov_b32 s{64 + len(stamps)}, s60")
        stamps.append(len(stamps))
        e("  s_lshl_b32 s4, s2, 2")
        e("  s_add_u32 s4, s4, s3")
        e("  s_lshl_b32 s4, s4, 8")
        e(f"  s_add_u32 s4, s4, {2 * 1152 * 8192}")
        e(f"  s_mov_b32 s26, {2 * 1152 * 8192 + 1024 * 256}")
        for k in stamps:
            e(f"  v_mov_b32 v20, s{64 + k}")
            e(f"  v_mov_b32 v21, 0")
            e(f"  buffer_store_dword v20, v21, s[24:27], s4 offen offset:{4 * k}")
    e("  s_endpgm")
    for lr in rare:
        rare_block(lr)
    e("L_loader:")
    e("  v_lshrrev_b32 v10, 5, v1")
    e("  v_and_b32 v11, 31, v1")
    for j in range(4):
        e(f"  v_add_u32 v12, {2 * j}, v10")
        e(f"  v_lshlrev_b32 v13, 1, v12")
        if "noswz" in MODE:
            e(f"  v_mov_b32 v13, v11")
        else:
            e(f"  v_xor_b32 v13, v13, v11")
        e(f"  v_lshlrev_b32 v13, 4, v13")
        e(f"  v_lshl_add_u32 v{2 + j}, v12, 9, v13")
        e(f"  v_lshl_add_u32 v{6 + j}, v12, 13, v13")
    def issue(n):
        kind, t = TILES[n]
        sbase = (n % NSLOT) * SLOT
        if "nodma" in MODE and kind != "W" and n >= 20:
            return
        for j in range(3 * CP, 16):
            if kind == "W":
                srd, so, v = 12, (32 * t + 8 * (j >> 2)) * 8192, 6 + (j & 3)
            else:
                srd, so, v = (16 if kind == "K" else 20), t * 16384 + (j >> 2) * 4096, 2 + (j & 3)
            e(f"  s_mov_b32 m0, {sbase + 1024 * j}")
            e(f"  s_mov_b32 s53, {so}")
            nt = " nt" if (kind != "W" and "nont" not in MODE) else ""
            e(f"  buffer_load_dwordx4 v{v}, s[{srd}:{srd + 3}], s53 offen{nt} lds")
    xpieces()
    for n in range(2):
        issue(n)
    e(f"  s_waitcnt vmcnt({2 * (16 - 3 * CP)})")
    e("  s_barrier")
    e("  s_barrier")
    for n in range(2, PD):
        issue(n)
    e("  s_cmp_eq_u32 s28, 0")
    e("  s_cselect_b32 s56, s56, s58")
    e("  s_cselect_b32 s57, s57, s59")
    e("  s_mov_b32 s60, s56")
    e("  s_and_b32 s61, s57, 0xffff")
    e(f"  s_mov_b32 s62, {4096 * 896}")
    e("  s_mov_b32 s63, 0x00020000")
    e(f"  s_mov_b32 s26, {WW + 2 * 7 * 4096 * 128}")
    e("  s_lshl_b32 s4, s30, 8")
    e("  s_lshl_b32 s5, s29, 5")
    e("  s_add_u32 s4, s4, s5")
    e("  s_mul_i32 s54, s4, 896")
    e("  s_mul_i32 s55, s28, 7 * 4096")
    e("  s_add_u32 s55, s55, s4")
    e("  s_lshl_b32 s55, s55, 7")
    e(f"  s_add_u32 s55, s55, {WW}")
    e("  v_lshlrev_b32 v12, 4, v1")
    e("  v_lshrrev_b32 v13, 3, v1")
    e("  v_lshlrev_b32 v13, 19, v13")
    e("  v_and_b32 v14, 7, v1")
    e("  v_lshl_add_u32 v13, v14, 4, v13")
    e("  s_mov_b32 exec_lo, -1")
    e("  s_mov_b32 exec_hi, 0x00ffffff")
    for r in range(32):
        e(f"  s_add_u32 s53, s54, {r * 896}")
        e(f"  buffer_load_dwordx4 v[{16 + 4 * r}:{19 + 4 * r}], v12, s[60:63], s53 offen")
    e("  s_mov_b64 exec, -1")
    for n in range(NT):
        last = min(n + PD - 1, NT - 1)
        e(f"  s_waitcnt vmcnt({min((16 - 3 * CP) * (last - n), 56)})")
        e("  s_barrier")
        if n + PD < NT:
            issue(n + PD)
        if n == 9:
            e("  s_mov_b32 exec_lo, -1")
            e("  s_mov_b32 exec_hi, 0x00ffffff")
            for r in range(32):
                e(f"  s_add_u32 s53, s55, {r * 128}")
                e(f"  buffer_store_dwordx4 v[{16 + 4 * r}:{19 + 4 * r}], v13, s[24:27], s53 offen")
            e("  s_mov_b64 exec, -1")
    e("  s_barrier")
    e("L_k1_end:")
    e("  s_endpgm")

def kernel2():
    NS2 = 5; SL2 = 32768; PD2 = 4; NSUB = 32
    ACC2 = 64
    AF = 16
    BFr = 32
    e(".p2align 8")
    e("oproj_kernel:")
    e("  s_cmp_ge_u32 s2, 252")
    e("  s_cbranch_scc1 L_k2_end")
    if "k2stamp" in MODE:
        e("  s_memrealtime s[96:97]")
    e("  s_load_dwordx2 s[32:33], s[0:1], 32")
    e("  s_load_dwordx2 s[34:35], s[0:1], 72")
    e("  s_load_dwordx2 s[36:37], s[0:1], 80")
    e("  s_load_dwordx2 s[38:39], s[0:1], 96")
    e("  s_and_b32 s4, s2, 7")
    e("  s_lshr_b32 s5, s2, 3")
    e("  s_lshl_b32 s6, s4, 5")
    e("  s_mul_i32 s7, s4, 31")
    e("  s_add_u32 s7, s7, 4")
    e("  s_cmp_lt_u32 s4, 4")
    e("  s_cselect_b32 s6, s6, s7")
    e("  s_add_u32 s6, s6, s5")
    e("  s_cmp_ge_u32 s6, 126")
    e("  s_cselect_b32 s28, 1, 0")
    e("  s_mul_i32 s4, s28, 126")
    e("  s_sub_u32 s4, s6, s4")
    e("  s_mul_i32 s29, s4, 9363")
    e("  s_lshr_b32 s29, s29, 16")
    e("  s_mul_i32 s5, s29, 7")
    e("  s_sub_u32 s30, s4, s5")
    e("  v_lshrrev_b32 v1, 6, v0")
    e("  s_nop 0")
    e("  v_readfirstlane_b32 s3, v1")
    e("  v_and_b32 v1, 63, v0")
    e("  s_waitcnt lgkmcnt(0)")
    e("  s_cmp_eq_u32 s28, 0")
    e("  s_cselect_b32 s32, s32, s34")
    e("  s_cselect_b32 s33, s33, s35")
    e("  s_mov_b32 s12, s38")
    e("  s_and_b32 s13, s39, 0xffff")
    e(f"  s_mov_b32 s14, {WW + 2 * 7 * 4096 * 128}")
    e("  s_mov_b32 s15, 0x00020000")
    e("  s_mov_b32 s16, s36")
    e("  s_and_b32 s17, s37, 0xffff")
    e(f"  s_mov_b32 s18, {1152 * 1792}")
    e("  s_mov_b32 s19, 0x00020000")
    e("  s_lshl_b32 s50, s3, 11")
    e("  s_and_b32 s40, s3, 3")
    e("  s_lshr_b32 s41, s3, 2")
    e("  v_and_b32 v9, 15, v1")
    e("  v_lshrrev_b32 v10, 4, v1")
    e("  v_lshrrev_b32 v11, 3, v1")
    e("  v_bfe_u32 v12, v11, 1, 1")
    e("  v_lshlrev_b32 v12, 1, v12")
    e("  v_and_b32 v13, 7, v1")
    e("  v_xor_b32 v12, v12, v13")
    e("  v_lshlrev_b32 v12, 4, v12")
    e("  s_lshl_b32 s5, s3, 4")
    e("  v_add_u32 v11, s5, v11")
    e("  v_lshlrev_b32 v11, 7, v11")
    e("  v_add_u32 v2, v11, v12")
    e("  s_mul_i32 s5, s28, 7")
    e("  s_add_u32 s5, s5, s30")
    e("  s_lshl_b32 s5, s5, 19")
    e(f"  s_add_u32 s5, s5, {WW}")
    e("  v_add_u32 v2, s5, v2")
    e("  v_xor_b32 v3, 64, v2")
    e(f"  v_add_u32 v3, {8 * 128}, v3")
    e("  v_lshlrev_b32 v12, 1, v10")
    e("  v_xor_b32 v12, v12, v9")
    e("  v_lshlrev_b32 v12, 4, v12")
    e("  s_lshl_b32 s4, s28, 4")
    e("  s_mul_i32 s4, s4, 1152")
    e("  s_lshl_b32 s5, s29, 6")
    e("  s_add_u32 s4, s4, s5")
    e("  s_lshl_b32 s5, s3, 3")
    e("  s_add_u32 s4, s4, s5")
    e("  v_add_u32 v11, s4, v10")
    e("  v_lshlrev_b32 v11, 9, v11")
    e("  v_add_u32 v4, v11, v12")
    e("  v_xor_b32 v5, 128, v4")
    e(f"  v_add_u32 v5, {4 * 512}, v5")
    e("  v_bfe_u32 v11, v1, 2, 2")
    e("  v_lshl_add_u32 v11, v10, 3, v11")
    e("  s_lshl_b32 s5, s40, 5")
    e("  v_add_u32 v11, s5, v11")
    e("  v_bfe_u32 v12, v1, 3, 1")
    e("  v_bfe_u32 v13, v1, 4, 1")
    e("  v_lshl_add_u32 v12, v13, 1, v12")
    e("  v_lshlrev_b32 v12, 1, v12")
    e("  v_bfe_u32 v13, v1, 1, 1")
    e("  v_or_b32 v12, v12, v13")
    e("  v_lshlrev_b32 v12, 4, v12")
    e("  v_lshl_add_u32 v6, v11, 7, v12")
    e("  v_and_b32 v13, 1, v1")
    e("  v_lshl_add_u32 v6, v13, 3, v6")
    e("  s_lshl_b32 s5, s40, 2")
    e("  v_add_u32 v12, s5, v10")
    e("  v_and_b32 v13, 7, v9")
    e("  v_lshlrev_b32 v13, 1, v13")
    e("  v_xor_b32 v12, v12, v13")
    e("  v_lshlrev_b32 v12, 4, v12")
    e("  s_lshl_b32 s5, s41, 5")
    e("  v_add_u32 v11, s5, v9")
    e("  v_lshl_add_u32 v7, v11, 8, v12")
    e("  v_add_u32 v7, 16384, v7")

    def loads(sb):
        sl = (sb % NS2) * SL2
        for j in range(2):
            e(f"  s_add_u32 m0, s50, {sl + 1024 * j}")
            e(f"  s_mov_b32 s53, {0 if 'k2now' in MODE else 128 * sb * 128}")
            e(f"  buffer_load_dwordx4 v{2 + j}, s[12:15], s53 offen{' nt' if 'k2ntw' in MODE else ''} lds")
        for j in range(2):
            e(f"  s_add_u32 m0, s50, {sl + 16384 + 1024 * j}")
            e(f"  s_mov_b32 s53, {0 if 'k2noo' in MODE else (sb >> 1) * 1152 * 512 + (sb & 1) * 256}")
            e(f"  buffer_load_dwordx4 v{4 + j}, s[12:15], s53 offen{' nt' if 'k2nto' in MODE else ''} lds")
    st2 = []
    def stamp2():
        if "k2stamp" not in MODE:
            return
        k = len(st2); st2.append(k)
        e("  s_memrealtime s[60:61]")
        e("  s_waitcnt lgkmcnt(0)")
        e(f"  s_mov_b32 s{64 + k}, s60")
    stamp2()
    for sb in range(PD2):
        loads(sb)
    for sb in range(NSUB):
        sl = (sb % NS2) * SL2
        last = min(sb + PD2 - 1, NSUB - 1)
        e(f"  s_waitcnt vmcnt({4 * (last - sb)})")
        e("  s_barrier")
        if sb % 2 == 0:
            stamp2()
        e(f"  v_add_u32 v8, {sl}, v6")
        e(f"  v_add_u32 v11, {sl}, v7")
        for mi in range(2):
            e(f"  ds_read_b128 v[{BFr + 4 * mi}:{BFr + 4 * mi + 3}], v11 offset:{16 * mi * 256}")
        for ni in range(4):
            e(f"  v_xor_b32 v{12 + ni}, {ni << 5}, v8")
            e(f"  ds_read_b64_tr_b16 v[{AF + 4 * ni}:{AF + 4 * ni + 1}], v{12 + ni}")
            e(f"  ds_read_b64_tr_b16 v[{AF + 4 * ni + 2}:{AF + 4 * ni + 3}], v{12 + ni} offset:512")
        if sb + PD2 < NSUB:
            loads(sb + PD2)
        for ni in range(4):
            e(f"  s_waitcnt lgkmcnt({2 * (3 - ni)})")
            for mi in range(2):
                d = ACC2 + 4 * (2 * ni + mi)
                c = "0" if sb == 0 else f"v[{d}:{d + 3}]"
                b = BFr + 4 * mi
                e(f"  v_mfma_f32_16x16x32_bf16 v[{d}:{d + 3}], v[{AF + 4 * ni}:{AF + 4 * ni + 3}], v[{b}:{b + 3}], {c}")
    e("  s_nop 7")
    e("  s_nop 1")
    e("  s_barrier")
    e("  v_lshlrev_b32 v5, 4, v1")
    e("  s_lshl_b32 s4, s3, 13")
    e("  v_add_u32 v5, s4, v5")
    for t in range(8):
        d = ACC2 + 4 * t
        e(f"  ds_write_b128 v5, v[{d}:{d + 3}] offset:{1024 * t}")
    e("  s_waitcnt lgkmcnt(0)")
    e("  s_barrier")
    e("  v_lshlrev_b32 v5, 4, v1")
    e("  s_lshl_b32 s4, s41, 15")
    e("  s_lshl_b32 s5, s40, 11")
    e("  s_add_u32 s4, s4, s5")
    e("  v_add_u32 v5, s4, v5")
    for tt in range(2):
        for p in range(4):
            r = 16 + 4 * p + 16 * tt
            e(f"  ds_read_b128 v[{r}:{r + 3}], v5 offset:{8192 * p + 1024 * tt}")
    e("  s_waitcnt lgkmcnt(0)")
    for tt in range(2):
        b0 = 16 + 16 * tt
        for p in range(1, 4):
            for r in range(4):
                e(f"  v_add_f32 v{b0 + r}, v{b0 + r}, v{b0 + 4 * p + r}")
    e("  s_lshl_b32 s4, s41, 5")
    e("  s_lshl_b32 s5, s29, 6")
    e("  s_add_u32 s4, s4, s5")
    e("  v_add_u32 v9, s4, v9")
    e("  v_mul_u32_u24 v9, 1792, v9")
    e("  v_lshl_add_u32 v9, v10, 3, v9")
    e("  s_mul_i32 s4, s28, 896")
    e("  s_lshl_b32 s5, s30, 7")
    e("  s_add_u32 s4, s4, s5")
    e("  s_lshl_b32 s5, s40, 5")
    e("  s_add_u32 s4, s4, s5")
    e("  v_add_u32 v9, s4, v9")
    for tt in range(2):
        b0 = 16 + 16 * tt
        e(f"  v_cvt_pk_bf16_f32 v{b0}, v{b0}, v{b0 + 1}")
        e(f"  v_cvt_pk_bf16_f32 v{b0 + 1}, v{b0 + 2}, v{b0 + 3}")
        e(f"  s_mov_b32 s53, {tt * 16 * 1792}")
        e(f"  buffer_store_dwordx2 v[{b0}:{b0 + 1}], v9, s[16:19], s53 offen")
    if "k2stamp" in MODE:
        stamp2()
        e(f"  s_mov_b32 s{64 + len(st2)}, s96")
        st2.append(len(st2))
        e("  s_lshl_b32 s4, s2, 3")
        e("  s_add_u32 s4, s4, s3")
        e("  s_lshl_b32 s4, s4, 7")
        e(f"  s_add_u32 s4, s4, {2 * 1152 * 8192}")
        e(f"  s_mov_b32 s14, {2 * 1152 * 8192 + 2048 * 128}")
        for k in st2:
            e(f"  v_mov_b32 v20, s{64 + k}")
            e(f"  v_mov_b32 v21, 0")
            e(f"  buffer_store_dword v20, v21, s[12:15], s4 offen offset:{4 * k}")
    e("L_k2_end:")
    e("  s_endpgm")

def main():
    hdr = open(f"cdna_kernels/{NAME}.s.ref").read().splitlines()
    for line in hdr:
        if line.startswith("; @launch"):
            break
        if "@launch" in line:
            continue
        e(line)
    e(f"; @launch kernel=attn_kernel grid=(256,1,1) block=(256,1,1) lds={NSLOT * SLOT}")
    e("; @launch kernel=oproj_kernel grid=(252,1,1) block=(512,1,1) lds=163840")
    e('.amdgcn_target "amdgcn-amd-amdhsa--gfx950"')
    e(".text")
    e(".globl attn_kernel")
    e(".p2align 8")
    e(".type attn_kernel,@function")
    kernel1()
    e(".globl oproj_kernel")
    e(".type oproj_kernel,@function")
    kernel2()
    e('.section .rodata,"a"')
    for name, nv, ao in (("attn_kernel", 480, 256), ("oproj_kernel", 96, 96)):
        e(".p2align 6")
        e(f".amdhsa_kernel {name}")
        e(f"  .amdhsa_next_free_vgpr {nv}")
        e("  .amdhsa_next_free_sgpr 100")
        e(f"  .amdhsa_accum_offset {ao}")
        e("  .amdhsa_group_segment_fixed_size 0")
        e("  .amdhsa_kernarg_size 104")
        e("  .amdhsa_user_sgpr_count 2")
        e("  .amdhsa_user_sgpr_kernarg_segment_ptr 1")
        e("  .amdhsa_system_sgpr_workgroup_id_x 1")
        e(".end_amdhsa_kernel")
    open(OUT, "w").write("\n".join(x for x in L if x is not None) + "\n")

main()
```

```python
import sys, os
MODE = os.environ.get("MODE", "")

NAME = "concat_heads__mha_block_cached__gqa_block_cached__near_ridge"
OUT = os.environ.get("OUT", f"cdna_kernels/{NAME}.s")

L = []
def e(s=""):
    L.append(s)

_lab = [0]
def newlabel(p="L"):
    _lab[0] += 1
    return f"{p}_{_lab[0]}"

NSLOT = int(os.environ.get("NSLOT", "10"))
SLOT = 16384
PD = NSLOT - 2
CP = int(os.environ.get("CP", "3"))
LOOK = int(os.environ.get("LOOK", "7"))
FBA = 192
QR = 32
SR = 128
PR = 224
VM = 10
VL = 13
VX = 16
VT = 19
def xreg(rt, ks):
    return 32 + 56 * rt + 4 * ks

TILES = [("W", m) for m in range(14)]
TILES += [("K", 0), ("K", 1)]
for c in range(8):
    if c < 7:
        TILES += [("K", 2 * c + 2), ("K", 2 * c + 3)]
    TILES += [("V", 2 * c), ("V", 2 * c + 1)]
NT = len(TILES)
assert NT == 46

def softmax_fillers(c, rare_blocks):
    F = []
    sb = SR + 48 * (c & 1)
    for rt in range(3):
        S = [sb + 16 * rt + i for i in range(16)]
        t = VT + 3 * rt
        x = VX + rt
        F += [f"v_max3_f32 v{t}, v{S[0]}, v{S[1]}, v{S[2]}",
              f"v_max3_f32 v{t+1}, v{S[3]}, v{S[4]}, v{S[5]}",
              f"v_max3_f32 v{t+2}, v{S[6]}, v{S[7]}, v{S[8]}",
              f"v_max3_f32 v{t}, v{t}, v{S[9]}, v{S[10]}",
              f"v_max3_f32 v{t+1}, v{t+1}, v{S[11]}, v{S[12]}",
              f"v_max3_f32 v{t+2}, v{t+2}, v{S[13]}, v{S[14]}",
              f"v_max3_f32 v{t}, v{t}, v{t+1}, v{S[15]}",
              f"v_max_f32 v{x}, v{t}, v{t+2}",
              f"v_mov_b32 v{t}, v{x}",
              "s_nop 1",
              f"v_permlane32_swap_b32 v{x}, v{t}",
              f"v_max_f32 v{x}, v{x}, v{t}",
              f"v_mov_b32 v{t}, v{x}",
              "s_nop 1",
              f"v_permlane16_swap_b32 v{x}, v{t}",
              f"v_max_f32 v{x}, v{x}, v{t}",
              f"v_mul_f32 v{x}, s51, v{x}"]
    if c == 0:
        for rt in range(3):
            F += [f"v_mov_b32 v{VM+rt}, v{VX+rt}"]
    else:
        lr = f"Lrare_{c}"
        F += [f"v_sub_f32 v{VT}, v{VX}, v{VM}",
              f"v_sub_f32 v{VT+1}, v{VX+1}, v{VM+1}",
              f"v_sub_f32 v{VT+2}, v{VX+2}, v{VM+2}",
              f"v_max3_f32 v{VT}, v{VT}, v{VT+1}, v{VT+2}",
              f"v_cmp_lt_f32 vcc, s52, v{VT}",
              f"s_cbranch_vccnz {lr}\n{lr}_ret:"]
        rare_blocks.append(lr)
    for rt in range(3):
        S = [sb + 16 * rt + i for i in range(16)]
        for i in range(16):
            F.append(f"v_fma_f32 v{S[i]}, v{S[i]}, s51, -v{VM+rt}")
        for i in range(16):
            F.append(f"v_exp_f32 v{S[i]}, v{S[i]}")
    for rt in range(3):
        S = [sb + 16 * rt + i for i in range(16)]
        t = VT + 3 * rt
        F += [f"v_add_f32 v{t}, v{S[0]}, v{S[1]}",
              f"v_add_f32 v{t+1}, v{S[2]}, v{S[3]}"]
        for i in range(4, 16, 2):
            F += [f"v_add_f32 v{t}, v{t}, v{S[i]}",
                  f"v_add_f32 v{t+1}, v{t+1}, v{S[i+1]}"]
        F += [f"v_add_f32 v{t}, v{t}, v{t+1}"]
        if c == 0:
            F += [f"v_mov_b32 v{VL+rt}, v{t}"]
        else:
            F += [f"v_add_f32 v{VL+rt}, v{VL+rt}, v{t}"]
    for rt in range(3):
        S = [sb + 16 * rt + i for i in range(16)]
        for j in range(2):
            for q in range(4):
                F.append(f"v_cvt_pk_bf16_f32 v{PR + 8*rt + 4*j + q}, v{S[8*j + 2*q]}, v{S[8*j + 2*q + 1]}")
    return F

def rare_block(lr):
    e(f"{lr}:")
    for rt in range(3):
        t = VT + 3 * rt
        e(f"  v_max_f32 v{t}, v{VM+rt}, v{VX+rt}")
        e(f"  v_sub_f32 v{t+1}, v{VM+rt}, v{t}")
        e(f"  v_exp_f32 v{t+1}, v{t+1}")
        e(f"  v_mov_b32 v{VM+rt}, v{t}")
        e(f"  v_mul_f32 v{VL+rt}, v{VL+rt}, v{t+1}")
        for i in range(64):
            a = 64 * rt + i
            e(f"  v_accvgpr_read_b32 v{t+2}, a{a}")
            e(f"  v_mul_f32 v{t+2}, v{t+2}, v{t+1}")
            e(f"  v_accvgpr_write_b32 a{a}, v{t+2}")
    e("  s_nop 1")
    e(f"  s_branch {lr}_ret")

XB = 32768
WW = 20971520
XS = 904
def xpieces():
    e("  v_lshlrev_b32 v28, 4, v1")
    e(f"  s_mul_i32 s5, s3, {XS}")
    e("  s_mul_i32 s6, s3, 896")
    e("  s_mov_b32 exec_lo, -1")
    e("  s_mov_b32 exec_hi, 0x00ffffff")
    for p in range(36):
        e(f"  s_add_u32 m0, s5, {XB + 4 * XS * p}")
        e(f"  s_add_u32 s53, s6, {4 * 896 * p}")
        e(f"  buffer_load_dwordx4 v28, s[8:11], s53 offen lds")
    e("  s_mov_b64 exec, -1")

def kernel1():
    e(f"attn_kernel:")
    e("  s_cmp_ge_u32 s2, 256")
    e("  s_cbranch_scc1 L_k1_end")
    if "stamp" in MODE:
        e("  s_memrealtime s[96:97]")
    e("  s_load_dwordx8 s[32:39], s[0:1], 0")
    e("  s_load_dwordx8 s[40:47], s[0:1], 40")
    e("  s_load_dwordx2 s[48:49], s[0:1], 96")
    e("  s_load_dwordx2 s[56:57], s[0:1], 32")
    e("  s_load_dwordx2 s[58:59], s[0:1], 72")
    e("  s_lshr_b32 s28, s2, 7")
    e("  s_lshr_b32 s29, s2, 4")
    e("  s_and_b32 s29, s29, 7")
    e("  s_and_b32 s30, s2, 15")
    e("  v_lshrrev_b32 v1, 6, v0")
    e("  s_nop 0")
    e("  v_readfirstlane_b32 s3, v1")
    e("  v_and_b32 v1, 63, v0")
    e("  s_waitcnt lgkmcnt(0)")
    e("  s_cmp_eq_u32 s28, 0")
    for i in range(8):
        e(f"  s_cselect_b32 s{32 + i}, s{32 + i}, s{40 + i}")
    e("  s_mul_i32 s4, s29, 129024")
    e("  s_add_u32 s8, s32, s4")
    e("  s_addc_u32 s9, s33, 0")
    e("  s_and_b32 s9, s9, 0xffff")
    e("  s_mov_b32 s10, 129024")
    e("  s_mov_b32 s11, 0x00020000")
    e("  s_lshl_b32 s4, s30, 9")
    e("  s_add_u32 s12, s38, s4")
    e("  s_addc_u32 s13, s39, 0")
    e("  s_and_b32 s13, s13, 0xffff")
    e(f"  s_sub_u32 s14, {448 * 8192}, s4")
    e("  s_mov_b32 s15, 0x00020000")
    e("  s_lshl_b32 s4, s29, 4")
    e("  s_add_u32 s4, s4, s30")
    e("  s_lshr_b32 s5, s4, 14")
    e("  s_lshl_b32 s4, s4, 18")
    e("  s_add_u32 s16, s34, s4")
    e("  s_addc_u32 s17, s35, s5")
    e("  s_and_b32 s17, s17, 0xffff")
    e("  s_mov_b32 s18, 262144")
    e("  s_mov_b32 s19, 0x00020000")
    e("  s_add_u32 s20, s36, s4")
    e("  s_addc_u32 s21, s37, s5")
    e("  s_and_b32 s21, s21, 0xffff")
    e("  s_mov_b32 s22, 262144")
    e("  s_mov_b32 s23, 0x00020000")
    e("  s_mov_b32 s24, s48")
    e("  s_and_b32 s25, s49, 0xffff")
    e(f"  s_mov_b32 s26, {2 * 1152 * 8192}")
    e("  s_mov_b32 s27, 0x00020000")
    e("  s_mov_b32 s51, 0x3db8aa3b")
    e("  s_mov_b32 s52, 0x41000000")
    e("  s_cmp_eq_u32 s3, 3")
    e("  s_cbranch_scc1 L_loader")
    e("  v_and_b32 v6, 15, v1")
    e("  v_lshrrev_b32 v7, 4, v1")
    e("  v_and_b32 v9, 7, v6")
    e("  v_lshlrev_b32 v9, 1, v9")
    e("  v_xor_b32 v9, v9, v7")
    e("  v_lshlrev_b32 v9, 4, v9")
    e("  v_lshl_add_u32 v2, v6, 9, v9")
    e("  v_lshrrev_b32 v8, 2, v1")
    e("  v_and_b32 v9, 7, v8")
    e("  v_lshlrev_b32 v9, 1, v9")
    e("  v_bfe_u32 v6, v1, 1, 1")
    e("  v_xor_b32 v6, v6, v9")
    e("  v_lshlrev_b32 v6, 4, v6")
    e("  v_lshl_add_u32 v3, v8, 9, v6")
    e("  v_and_b32 v6, 1, v1")
    e("  v_lshl_add_u32 v3, v6, 3, v3")
    e("  v_and_b32 v6, 3, v1")
    e("  v_xor_b32 v6, v6, v9")
    e("  v_lshlrev_b32 v6, 4, v6")
    e("  v_lshl_add_u32 v4, v8, 9, v6")

    e(f"  s_mul_i32 s6, s3, {CP}")
    e(f"  s_lshl_b32 s50, s6, 10")
    e("  s_lshl_b32 s6, s6, 1")
    e("  v_lshrrev_b32 v8, 5, v1")
    e("  v_add_u32 v8, s6, v8")
    e("  v_and_b32 v9, 31, v1")
    for i in range(CP):
        e(f"  v_add_u32 v6, {2 * i}, v8")
        e(f"  v_and_b32 v7, 7, v6")
        e(f"  v_lshlrev_b32 v7, 1, v7")
        e(f"  v_xor_b32 v7, v7, v9")
        e(f"  v_lshlrev_b32 v7, 4, v7")
        e(f"  v_lshl_add_u32 v{248 + i}, v6, 9, v7")
        e(f"  v_lshl_add_u32 v{248 + CP + i}, v6, 13, v7")
    def cpieces(n):
        kind, t = TILES[n]
        sbase = (n % NSLOT) * SLOT
        out = []
        if "nodma" in MODE and kind != "W" and n >= 20:
            return out
        for i in range(CP):
            if kind == "W":
                srd, so, v, nt = 12, 32 * t * 8192, 248 + CP + i, ""
            else:
                srd, so, v, nt = (16 if kind == "K" else 20), t * 16384, 248 + i, " nt"
            out += [f"s_add_u32 m0, s50, {sbase + 1024 * i}", f"s_mov_b32 s53, {so}",
                    f"buffer_load_dwordx4 v{v}, s[{srd}:{srd + 3}], s53 offen{nt} lds"]
        return out
    def pst(k):
        if "stamp" in MODE:
            e("  s_memrealtime s[60:61]")
            e("  s_waitcnt lgkmcnt(0)")
            e(f"  s_mov_b32 s{88 + k}, s60")
    pst(0)
    xpieces()
    for n in range(2):
        for x in cpieces(n):
            e("  " + x)
    pst(1)
    e(f"  s_waitcnt vmcnt({2 * CP})")
    e("  s_barrier")
    pst(2)
    e("  v_and_b32 v6, 15, v1")
    e("  v_lshrrev_b32 v7, 4, v1")
    e("  s_mul_i32 s5, s3, 48")
    e("  v_add_u32 v8, s5, v6")
    e(f"  v_mul_u32_u24 v8, {XS}, v8")
    e("  v_lshl_add_u32 v8, v7, 3, v8")
    e(f"  v_add_u32 v8, {XB}, v8")
    cnt = 0
    for rt in range(3):
        for ks in range(14):
            r = xreg(rt, ks)
            e(f"  ds_read_b64 v[{r}:{r + 1}], v8 offset:{rt * 16 * XS + 64 * ks}")
            e(f"  ds_read_b64 v[{r + 2}:{r + 3}], v8 offset:{rt * 16 * XS + 64 * ks + 32}")
            cnt += 2
            if cnt % 14 == 0:
                e("  s_waitcnt lgkmcnt(6)")
    e("  s_waitcnt lgkmcnt(0)")
    pst(3)
    e("  s_barrier")
    for n in range(2, PD):
        for x in cpieces(n):
            e("  " + x)
    frags = []
    atmp = [6, 7, 8, 9]
    ac = [0]
    def nexta():
        ac[0] += 1
        return atmp[ac[0] % 4]
    for n, (kind, t) in enumerate(TILES):
        sbase = (n % NSLOT) * SLOT
        for f in range(16):
            fr = dict(pre=[], reads=[], mf=[], post=[], phase=n)
            if f == 0:
                last = min(n + PD - 1, NT - 1)
                fr["pre"].append(f"s_waitcnt vmcnt({CP * (last - n)})")
                fr["pre"].append("s_barrier")
                if n + PD < NT:
                    fr["pre"] += cpieces(n + PD)
                a0 = {"W": 4, "K": 2, "V": 3}[kind]
                fr["pre"].append(f"v_add_u32 v5, {sbase}, v{a0}")
            if kind == "W":
                s, hb = f >> 1, f & 1
                if hb == 0:
                    a = nexta(); cur = a
                    fr["pre"].append(f"v_xor_b32 v{a}, {(s & 3) << 6}, v5")
                a = cur
                off = 256 * (s >> 2) + 8 * hb
                fr["reads"] = [f"ds_read_b64_tr_b16 a[{{fb}}:{{fb1}}], v{a} offset:{off}",
                               f"ds_read_b64_tr_b16 a[{{fb2}}:{{fb3}}], v{a} offset:{off + 8192}"]
                for rt in range(3):
                    d = 64 * rt + 4 * f
                    c = "0" if t == 0 else f"a[{d}:{d + 3}]"
                    b = xreg(rt, t)
                    fr["mf"].append(f"v_mfma_f32_16x16x32_bf16 a[{d}:{d + 3}], a[{{fb}}:{{fb3}}], v[{b}:{b + 3}], {c}")
            elif kind == "V":
                a = nexta()
                fr["pre"].append(f"v_xor_b32 v{a}, {(f & 7) << 5}, v5")
                off = 256 * (f >> 3)
                fr["reads"] = [f"ds_read_b64_tr_b16 a[{{fb}}:{{fb1}}], v{a} offset:{off}",
                               f"ds_read_b64_tr_b16 a[{{fb2}}:{{fb3}}], v{a} offset:{off + 8192}"]
                for rt in range(3):
                    d = 64 * rt + 4 * f
                    c = "0" if t == 0 else f"a[{d}:{d + 3}]"
                    b = PR + 8 * rt + 4 * (t & 1)
                    fr["mf"].append(f"v_mfma_f32_16x16x32_bf16 a[{d}:{d + 3}], a[{{fb}}:{{fb3}}], v[{b}:{b + 3}], {c}")
            else:
                s, tl = f >> 1, f & 1
                if tl == 0:
                    a = nexta(); cur = a
                    fr["pre"].append(f"v_xor_b32 v{a}, {(s & 3) << 6}, v5")
                a = cur
                off = 256 * (s >> 2) + 8192 * tl
                fr["reads"] = [f"ds_read_b128 a[{{fb}}:{{fb3}}], v{a} offset:{off}"]
                ch = t >> 1
                for rt in range(3):
                    d = SR + 48 * (ch & 1) + 16 * rt + 4 * (2 * (t & 1) + tl)
                    c = "0" if s == 0 else f"v[{d}:{d + 3}]"
                    q = QR + 32 * rt + 4 * s
                    fr["mf"].append(f"v_mfma_f32_16x16x32_bf16 v[{d}:{d + 3}], a[{{fb}}:{{fb3}}], v[{q}:{q + 3}], {c}")
            frags.append(fr)
    N = len(frags)
    post = ["s_nop 7", "s_nop 1"]
    for rt in range(3):
        for s in range(8):
            for q in range(4):
                a = 64 * rt + 8 * s + 2 * q
                post += [f"v_accvgpr_read_b32 v{VT}, a{a}", f"v_accvgpr_read_b32 v{VT+1}, a{a+1}",
                         f"v_cvt_pk_bf16_f32 v{QR + 32*rt + 4*s + q}, v{VT}, v{VT+1}"]
    post += ["s_nop 1"]
    frags[14 * 16 - 1]["post"] = post
    rare = []
    fillers = {}
    tidx = {tk: n for n, tk in enumerate(TILES)}
    for c in range(8):
        F = softmax_fillers(c, rare)
        if c < 7:
            p0 = tidx[("K", 2 * c + 2)]
            h = len(F) // 2
            fillers[p0] = F[:h]
            fillers[p0 + 1] = F[h:]
        else:
            frags[(tidx[("V", 13)] + 1) * 16 - 1]["post"] = ["s_nop 7"] + F + ["s_nop 1"]

    def fmt(s, i):
        fb = FBA + 4 * (i % 8)
        return s.format(fb=fb, fb1=fb + 1, fb2=fb + 2, fb3=fb + 3)
    stamps = []
    def stamp():
        if "stamp" not in MODE:
            return
        k = len(stamps)
        stamps.append(k)
        e("  s_memtime s[60:61]")
        e("  s_waitcnt lgkmcnt(0)")
        e(f"  s_mov_b32 s{64 + k}, s60")
        if k == 0:
            e("  s_memrealtime s[60:61]")
            e("  s_waitcnt lgkmcnt(0)")
            e(f"  s_mov_b32 s98, s60")
    def issue_reads(i):
        if i % 32 == 0 or i == 14 * 16:
            stamp()
        for x in frags[i]["pre"]:
            e("  " + x)
        for x in frags[i]["reads"]:
            e("  " + fmt(x, i))
    stamp()

    for i in range(LOOK):
        issue_reads(i)
    for i in range(N):
        out = sum(len(frags[k]["reads"]) for k in range(i + 1, min(i + LOOK, N)))
        e(f"  s_waitcnt lgkmcnt({out})")
        ph = frags[i]["phase"]
        F = fillers.get(ph, [])
        fi = i % 16
        side = []
        if i + LOOK < N:
            j = i + LOOK
            if "stamp" in MODE and (j % 64 == 32 or j == 14 * 16):
                side.append("@stamp")
            side += list(frags[j]["pre"]) + [fmt(x, j) for x in frags[j]["reads"]]
        ns = len(side)
        for mi, m in enumerate(frags[i]["mf"]):
            if "nocompute" not in MODE:
                e("  " + fmt(m, i))
            for x in side[mi * ns // 3:(mi + 1) * ns // 3]:
                if x == "@stamp":
                    stamp()
                else:
                    e("  " + x)
            k = fi * 3 + mi
            if F and k >= 3:
                lo = (k - 3) * len(F) // 45
                hi = (k - 2) * len(F) // 45
                for x in F[lo:hi]:
                    e("  " + x)
        for x in frags[i]["post"]:
            e("  " + x)
    stamp()
    e("  s_nop 7")
    e("  s_nop 1")
    for rt in range(3):
        l = VL + rt
        e(f"  v_mov_b32 v{VT}, v{l}")
        e("  s_nop 1")
        e(f"  v_permlane32_swap_b32 v{l}, v{VT}")
        e(f"  v_add_f32 v{l}, v{l}, v{VT}")
        e(f"  v_mov_b32 v{VT}, v{l}")
        e("  s_nop 1")
        e(f"  v_permlane16_swap_b32 v{l}, v{VT}")
        e(f"  v_add_f32 v{l}, v{l}, v{VT}")
        e(f"  v_rcp_f32 v{l}, v{l}")
    e("  s_barrier")
    stamp()
    e("  s_mul_i32 s4, s3, 25344")
    e("  v_and_b32 v9, 15, v1")
    e("  v_mul_u32_u24 v9, 528, v9")
    e("  v_lshrrev_b32 v8, 4, v1")
    e("  v_lshl_add_u32 v9, v8, 3, v9")
    e("  v_add_u32 v9, s4, v9")
    k = 0
    for rt in range(3):
        for t in range(16):
            a = 64 * rt + 4 * t
            tb = 128 + 8 * (k % 8); k += 1
            for r in range(4):
                e(f"  v_accvgpr_read_b32 v{tb + r}, a{a + r}")
            for r in range(4):
                e(f"  v_mul_f32 v{tb + r}, v{VL + rt}, v{tb + r}")
            e(f"  v_cvt_pk_bf16_f32 v{tb + 4}, v{tb}, v{tb + 1}")
            e(f"  v_cvt_pk_bf16_f32 v{tb + 5}, v{tb + 2}, v{tb + 3}")
            e(f"  ds_write_b64 v9, v[{tb + 4}:{tb + 5}] offset:{rt * 16 * 528 + 32 * t}")
    e("  v_lshrrev_b32 v8, 5, v1")
    e("  v_and_b32 v7, 31, v1")
    e("  v_mul_u32_u24 v9, 528, v8")
    e("  v_lshl_add_u32 v9, v7, 4, v9")
    e("  v_add_u32 v9, s4, v9")
    e("  s_lshl_b32 s4, s28, 4")
    e("  s_add_u32 s4, s4, s30")
    e("  s_mul_i32 s4, s4, 1152")
    e("  s_mul_i32 s5, s29, 144")
    e("  s_add_u32 s4, s4, s5")
    e("  s_mul_i32 s5, s3, 48")
    e("  s_add_u32 s4, s4, s5")
    e("  s_lshl_b32 s4, s4, 9")
    e("  v_lshlrev_b32 v8, 9, v8")
    e("  v_lshl_add_u32 v8, v7, 4, v8")
    e("  s_waitcnt lgkmcnt(0)")
    stamp()
    for hh in range(2):
        for i in range(12 * hh, 12 * hh + 12):
            e(f"  ds_read_b128 v[{32 + 4 * i}:{35 + 4 * i}], v9 offset:{2 * i * 528}")
        for i in range(12 * hh, 12 * hh + 12):
            e(f"  s_waitcnt lgkmcnt({12 * hh + 11 - i})")
            e(f"  s_add_u32 s5, s4, {1024 * i}")
            e(f"  buffer_store_dwordx4 v[{32 + 4 * i}:{35 + 4 * i}], v8, s[24:27], s5 offen{' nt' if 'ostnt' in MODE else ''}")
    if "stamp" in MODE:
        stamp()
        e("  s_memrealtime s[60:61]")
        e("  s_waitcnt lgkmcnt(0)")
        assert len(stamps) <= 24
        e("  s_mov_b32 s93, s96")
        e("  s_mov_b32 s94, s98")
        e("  s_mov_b32 s95, s60")
        stamps += [24, 25, 26, 27, 29, 30, 31]
        e("  s_lshl_b32 s4, s2, 2")
        e("  s_add_u32 s4, s4, s3")
        e("  s_lshl_b32 s4, s4, 8")
        e(f"  s_add_u32 s4, s4, {2 * 1152 * 8192}")
        e(f"  s_mov_b32 s26, {2 * 1152 * 8192 + 1024 * 256}")
        for k in stamps:
            e(f"  v_mov_b32 v20, s{64 + k}")
            e(f"  v_mov_b32 v21, 0")
            e(f"  buffer_store_dword v20, v21, s[24:27], s4 offen offset:{4 * k}")
    e("  s_endpgm")
    for lr in rare:
        rare_block(lr)
    e("L_loader:")
    e("  v_lshrrev_b32 v10, 5, v1")
    e("  v_and_b32 v11, 31, v1")
    for j in range(4):
        e(f"  v_add_u32 v12, {2 * j}, v10")
        e(f"  v_lshlrev_b32 v13, 1, v12")
        if "noswz" in MODE:
            e(f"  v_mov_b32 v13, v11")
        else:
            e(f"  v_xor_b32 v13, v13, v11")
        e(f"  v_lshlrev_b32 v13, 4, v13")
        e(f"  v_lshl_add_u32 v{2 + j}, v12, 9, v13")
        e(f"  v_lshl_add_u32 v{6 + j}, v12, 13, v13")
    def issue(n):
        kind, t = TILES[n]
        sbase = (n % NSLOT) * SLOT
        if "nodma" in MODE and kind != "W" and n >= 20:
            return
        for j in range(3 * CP, 16):
            if kind == "W":
                srd, so, v = 12, (32 * t + 8 * (j >> 2)) * 8192, 6 + (j & 3)
            else:
                srd, so, v = (16 if kind == "K" else 20), t * 16384 + (j >> 2) * 4096, 2 + (j & 3)
            e(f"  s_mov_b32 m0, {sbase + 1024 * j}")
            e(f"  s_mov_b32 s53, {so}")
            nt = " nt" if (kind != "W" and "nont" not in MODE) else ""
            e(f"  buffer_load_dwordx4 v{v}, s[{srd}:{srd + 3}], s53 offen{nt} lds")
    xpieces()
    for n in range(2):
        issue(n)
    e(f"  s_waitcnt vmcnt({2 * (16 - 3 * CP)})")
    e("  s_barrier")
    e("  s_barrier")
    for n in range(2, PD):
        issue(n)
    e("  s_cmp_eq_u32 s28, 0")
    e("  s_cselect_b32 s56, s56, s58")
    e("  s_cselect_b32 s57, s57, s59")
    e("  s_mov_b32 s60, s56")
    e("  s_and_b32 s61, s57, 0xffff")
    e(f"  s_mov_b32 s62, {4096 * 896}")
    e("  s_mov_b32 s63, 0x00020000")
    e(f"  s_mov_b32 s26, {WW + 2 * 7 * 4096 * 128}")
    e("  s_lshl_b32 s4, s30, 8")
    e("  s_lshl_b32 s5, s29, 5")
    e("  s_add_u32 s4, s4, s5")
    e("  s_mul_i32 s54, s4, 896")
    e("  s_mul_i32 s55, s28, 7 * 4096")
    e("  s_add_u32 s55, s55, s4")
    e("  s_lshl_b32 s55, s55, 7")
    e(f"  s_add_u32 s55, s55, {WW}")
    e("  v_lshlrev_b32 v12, 4, v1")
    e("  v_lshrrev_b32 v13, 3, v1")
    e("  v_lshlrev_b32 v13, 19, v13")
    e("  v_and_b32 v14, 7, v1")
    e("  v_lshl_add_u32 v13, v14, 4, v13")
    for n in range(NT):
        last = min(n + PD - 1, NT - 1)
        e(f"  s_waitcnt vmcnt({min((16 - 3 * CP) * (last - n), 56)})")
        e("  s_barrier")
        if n + PD < NT:
            issue(n + PD)
        if n == 14:
            e("  s_mov_b32 exec_lo, -1")
            e("  s_mov_b32 exec_hi, 0x00ffffff")
            for r in range(32):
                e(f"  s_add_u32 s53, s54, {r * 896}")
                e(f"  buffer_load_dwordx4 v[{16 + 4 * r}:{19 + 4 * r}], v12, s[60:63], s53 offen nt")
            e("  s_mov_b64 exec, -1")
        if n == 24:
            e("  s_mov_b32 exec_lo, -1")
            e("  s_mov_b32 exec_hi, 0x00ffffff")
            for r in range(32):
                e(f"  s_add_u32 s53, s55, {r * 128}")
                e(f"  buffer_store_dwordx4 v[{16 + 4 * r}:{19 + 4 * r}], v13, s[24:27], s53 offen")
            e("  s_mov_b64 exec, -1")
    e("  s_barrier")
    e("L_k1_end:")
    e("  s_endpgm")

def kernel2():
    NS2 = 5; SL2 = 32768; PD2 = 4; NSUB = 32
    ACC2 = 64
    AF = 16
    BFr = 32
    e(".p2align 8")
    e("oproj_kernel:")
    e("  s_cmp_ge_u32 s2, 252")
    e("  s_cbranch_scc1 L_k2_end")
    if "k2stamp" in MODE:
        e("  s_memrealtime s[96:97]")
    e("  s_load_dwordx2 s[32:33], s[0:1], 32")
    e("  s_load_dwordx2 s[34:35], s[0:1], 72")
    e("  s_load_dwordx2 s[36:37], s[0:1], 80")
    e("  s_load_dwordx2 s[38:39], s[0:1], 96")
    e("  s_and_b32 s4, s2, 7")
    e("  s_lshr_b32 s5, s2, 3")
    e("  s_lshl_b32 s6, s4, 5")
    e("  s_mul_i32 s7, s4, 31")
    e("  s_add_u32 s7, s7, 4")
    e("  s_cmp_lt_u32 s4, 4")
    e("  s_cselect_b32 s6, s6, s7")
    e("  s_add_u32 s6, s6, s5")
    e("  s_cmp_ge_u32 s6, 126")
    e("  s_cselect_b32 s28, 1, 0")
    e("  s_mul_i32 s4, s28, 126")
    e("  s_sub_u32 s4, s6, s4")
    e("  s_mul_i32 s29, s4, 9363")
    e("  s_lshr_b32 s29, s29, 16")
    e("  s_mul_i32 s5, s29, 7")
    e("  s_sub_u32 s30, s4, s5")
    e("  v_lshrrev_b32 v1, 6, v0")
    e("  s_nop 0")
    e("  v_readfirstlane_b32 s3, v1")
    e("  v_and_b32 v1, 63, v0")
    e("  s_waitcnt lgkmcnt(0)")
    e("  s_cmp_eq_u32 s28, 0")
    e("  s_cselect_b32 s32, s32, s34")
    e("  s_cselect_b32 s33, s33, s35")
    e("  s_mov_b32 s12, s38")
    e("  s_and_b32 s13, s39, 0xffff")
    e(f"  s_mov_b32 s14, {WW + 2 * 7 * 4096 * 128}")
    e("  s_mov_b32 s15, 0x00020000")
    e("  s_mov_b32 s16, s36")
    e("  s_and_b32 s17, s37, 0xffff")
    e(f"  s_mov_b32 s18, {1152 * 1792}")
    e("  s_mov_b32 s19, 0x00020000")
    e("  s_lshl_b32 s50, s3, 11")
    e("  s_and_b32 s40, s3, 3")
    e("  s_lshr_b32 s41, s3, 2")
    e("  v_and_b32 v9, 15, v1")
    e("  v_lshrrev_b32 v10, 4, v1")
    e("  v_lshrrev_b32 v11, 3, v1")
    e("  v_bfe_u32 v12, v11, 1, 1")
    e("  v_lshlrev_b32 v12, 1, v12")
    e("  v_and_b32 v13, 7, v1")
    e("  v_xor_b32 v12, v12, v13")
    e("  v_lshlrev_b32 v12, 4, v12")
    e("  s_lshl_b32 s5, s3, 4")
    e("  v_add_u32 v11, s5, v11")
    e("  v_lshlrev_b32 v11, 7, v11")
    e("  v_add_u32 v2, v11, v12")
    e("  s_mul_i32 s5, s28, 7")
    e("  s_add_u32 s5, s5, s30")
    e("  s_lshl_b32 s5, s5, 19")
    e(f"  s_add_u32 s5, s5, {WW}")
    e("  v_add_u32 v2, s5, v2")
    e("  v_xor_b32 v3, 64, v2")
    e(f"  v_add_u32 v3, {8 * 128}, v3")
    e("  v_lshlrev_b32 v12, 1, v10")
    e("  v_xor_b32 v12, v12, v9")
    e("  v_lshlrev_b32 v12, 4, v12")
    e("  s_lshl_b32 s4, s28, 4")
    e("  s_mul_i32 s4, s4, 1152")
    e("  s_lshl_b32 s5, s29, 6")
    e("  s_add_u32 s4, s4, s5")
    e("  s_lshl_b32 s5, s3, 3")
    e("  s_add_u32 s4, s4, s5")
    e("  v_add_u32 v11, s4, v10")
    e("  v_lshlrev_b32 v11, 9, v11")
    e("  v_add_u32 v4, v11, v12")
    e("  v_xor_b32 v5, 128, v4")
    e(f"  v_add_u32 v5, {4 * 512}, v5")
    e("  v_bfe_u32 v11, v1, 2, 2")
    e("  v_lshl_add_u32 v11, v10, 3, v11")
    e("  s_lshl_b32 s5, s40, 5")
    e("  v_add_u32 v11, s5, v11")
    e("  v_bfe_u32 v12, v1, 3, 1")
    e("  v_bfe_u32 v13, v1, 4, 1")
    e("  v_lshl_add_u32 v12, v13, 1, v12")
    e("  v_lshlrev_b32 v12, 1, v12")
    e("  v_bfe_u32 v13, v1, 1, 1")
    e("  v_or_b32 v12, v12, v13")
    e("  v_lshlrev_b32 v12, 4, v12")
    e("  v_lshl_add_u32 v6, v11, 7, v12")
    e("  v_and_b32 v13, 1, v1")
    e("  v_lshl_add_u32 v6, v13, 3, v6")
    e("  s_lshl_b32 s5, s40, 2")
    e("  v_add_u32 v12, s5, v10")
    e("  v_and_b32 v13, 7, v9")
    e("  v_lshlrev_b32 v13, 1, v13")
    e("  v_xor_b32 v12, v12, v13")
    e("  v_lshlrev_b32 v12, 4, v12")
    e("  s_lshl_b32 s5, s41, 5")
    e("  v_add_u32 v11, s5, v9")
    e("  v_lshl_add_u32 v7, v11, 8, v12")
    e("  v_add_u32 v7, 16384, v7")

    def loads(sb):
        sl = (sb % NS2) * SL2
        for j in range(2):
            e(f"  s_add_u32 m0, s50, {sl + 1024 * j}")
            e(f"  s_mov_b32 s53, {0 if 'k2now' in MODE else 128 * sb * 128}")
            e(f"  buffer_load_dwordx4 v{2 + j}, s[12:15], s53 offen{' nt' if 'k2ntw' in MODE else ''} lds")
        for j in range(2):
            e(f"  s_add_u32 m0, s50, {sl + 16384 + 1024 * j}")
            e(f"  s_mov_b32 s53, {0 if 'k2noo' in MODE else (sb >> 1) * 1152 * 512 + (sb & 1) * 256}")
            e(f"  buffer_load_dwordx4 v{4 + j}, s[12:15], s53 offen{' nt' if 'k2nto' in MODE else ''} lds")
    st2 = []
    def stamp2():
        if "k2stamp" not in MODE:
            return
        k = len(st2); st2.append(k)
        e("  s_memrealtime s[60:61]")
        e("  s_waitcnt lgkmcnt(0)")
        e(f"  s_mov_b32 s{64 + k}, s60")
    stamp2()
    for sb in range(PD2):
        loads(sb)
    for sb in range(NSUB):
        sl = (sb % NS2) * SL2
        last = min(sb + PD2 - 1, NSUB - 1)
        e(f"  s_waitcnt vmcnt({4 * (last - sb)})")
        e("  s_barrier")
        if sb % 2 == 0:
            stamp2()
        e(f"  v_add_u32 v8, {sl}, v6")
        e(f"  v_add_u32 v11, {sl}, v7")
        for mi in range(2):
            e(f"  ds_read_b128 v[{BFr + 4 * mi}:{BFr + 4 * mi + 3}], v11 offset:{16 * mi * 256}")
        for ni in range(4):
            e(f"  v_xor_b32 v{12 + ni}, {ni << 5}, v8")
            e(f"  ds_read_b64_tr_b16 v[{AF + 4 * ni}:{AF + 4 * ni + 1}], v{12 + ni}")
            e(f"  ds_read_b64_tr_b16 v[{AF + 4 * ni + 2}:{AF + 4 * ni + 3}], v{12 + ni} offset:512")
        if sb + PD2 < NSUB:
            loads(sb + PD2)
        for ni in range(4):
            e(f"  s_waitcnt lgkmcnt({2 * (3 - ni)})")
            for mi in range(2):
                d = ACC2 + 4 * (2 * ni + mi)
                c = "0" if sb == 0 else f"v[{d}:{d + 3}]"
                b = BFr + 4 * mi
                e(f"  v_mfma_f32_16x16x32_bf16 v[{d}:{d + 3}], v[{AF + 4 * ni}:{AF + 4 * ni + 3}], v[{b}:{b + 3}], {c}")
    e("  s_nop 7")
    e("  s_nop 1")
    e("  s_barrier")
    e("  v_lshlrev_b32 v5, 4, v1")
    e("  s_lshl_b32 s4, s3, 13")
    e("  v_add_u32 v5, s4, v5")
    for t in range(8):
        d = ACC2 + 4 * t
        e(f"  ds_write_b128 v5, v[{d}:{d + 3}] offset:{1024 * t}")
    e("  s_waitcnt lgkmcnt(0)")
    e("  s_barrier")
    e("  v_lshlrev_b32 v5, 4, v1")
    e("  s_lshl_b32 s4, s41, 15")
    e("  s_lshl_b32 s5, s40, 11")
    e("  s_add_u32 s4, s4, s5")
    e("  v_add_u32 v5, s4, v5")
    for tt in range(2):
        for p in range(4):
            r = 16 + 4 * p + 16 * tt
            e(f"  ds_read_b128 v[{r}:{r + 3}], v5 offset:{8192 * p + 1024 * tt}")
    e("  s_waitcnt lgkmcnt(0)")
    for tt in range(2):
        b0 = 16 + 16 * tt
        for p in range(1, 4):
            for r in range(4):
                e(f"  v_add_f32 v{b0 + r}, v{b0 + r}, v{b0 + 4 * p + r}")
    e("  s_lshl_b32 s4, s41, 5")
    e("  s_lshl_b32 s5, s29, 6")
    e("  s_add_u32 s4, s4, s5")
    e("  v_add_u32 v9, s4, v9")
    e("  v_mul_u32_u24 v9, 1792, v9")
    e("  v_lshl_add_u32 v9, v10, 3, v9")
    e("  s_mul_i32 s4, s28, 896")
    e("  s_lshl_b32 s5, s30, 7")
    e("  s_add_u32 s4, s4, s5")
    e("  s_lshl_b32 s5, s40, 5")
    e("  s_add_u32 s4, s4, s5")
    e("  v_add_u32 v9, s4, v9")
    for tt in range(2):
        b0 = 16 + 16 * tt
        e(f"  v_cvt_pk_bf16_f32 v{b0}, v{b0}, v{b0 + 1}")
        e(f"  v_cvt_pk_bf16_f32 v{b0 + 1}, v{b0 + 2}, v{b0 + 3}")
        e(f"  s_mov_b32 s53, {tt * 16 * 1792}")
        e(f"  buffer_store_dwordx2 v[{b0}:{b0 + 1}], v9, s[16:19], s53 offen")
    if "k2stamp" in MODE:
        stamp2()
        e(f"  s_mov_b32 s{64 + len(st2)}, s96")
        st2.append(len(st2))
        e("  s_lshl_b32 s4, s2, 3")
        e("  s_add_u32 s4, s4, s3")
        e("  s_lshl_b32 s4, s4, 7")
        e(f"  s_add_u32 s4, s4, {2 * 1152 * 8192}")
        e(f"  s_mov_b32 s14, {2 * 1152 * 8192 + 2048 * 128}")
        for k in st2:
            e(f"  v_mov_b32 v20, s{64 + k}")
            e(f"  v_mov_b32 v21, 0")
            e(f"  buffer_store_dword v20, v21, s[12:15], s4 offen offset:{4 * k}")
    e("L_k2_end:")
    e("  s_endpgm")

def main():
    hdr = open(f"cdna_kernels/{NAME}.s.ref").read().splitlines()
    for line in hdr:
        if line.startswith("; @launch"):
            break
        if "@launch" in line:
            continue
        e(line)
    e(f"; @launch kernel=attn_kernel grid=(256,1,1) block=(256,1,1) lds={NSLOT * SLOT}")
    e("; @launch kernel=oproj_kernel grid=(252,1,1) block=(512,1,1) lds=163840")
    e('.amdgcn_target "amdgcn-amd-amdhsa--gfx950"')
    e(".text")
    e(".globl attn_kernel")
    e(".p2align 8")
    e(".type attn_kernel,@function")
    kernel1()
    e(".globl oproj_kernel")
    e(".type oproj_kernel,@function")
    kernel2()
    e('.section .rodata,"a"')
    for name, nv, ao in (("attn_kernel", 480, 256), ("oproj_kernel", 96, 96)):
        e(".p2align 6")
        e(f".amdhsa_kernel {name}")
        e(f"  .amdhsa_next_free_vgpr {nv}")
        e("  .amdhsa_next_free_sgpr 100")
        e(f"  .amdhsa_accum_offset {ao}")
        e("  .amdhsa_group_segment_fixed_size 0")
        e("  .amdhsa_kernarg_size 104")
        e("  .amdhsa_user_sgpr_count 2")
        e("  .amdhsa_user_sgpr_kernarg_segment_ptr 1")
        e("  .amdhsa_system_sgpr_workgroup_id_x 1")
        e(".end_amdhsa_kernel")
    open(OUT, "w").write("\n".join(x for x in L if x is not None) + "\n")

main()
```

```python
import sys, os
MODE = os.environ.get("MODE", "")

NAME = "concat_heads__mha_block_cached__gqa_block_cached__near_ridge"
OUT = os.environ.get("OUT", f"cdna_kernels/{NAME}.s")

L = []
def e(s=""):
    L.append(s)

_lab = [0]
def newlabel(p="L"):
    _lab[0] += 1
    return f"{p}_{_lab[0]}"

NSLOT = int(os.environ.get("NSLOT", "10"))
SLOT = 16384
PD = NSLOT - 2
PFN = int(os.environ.get("PFN", "0"))
PFNT = os.environ.get("PFNT", "")
CP = int(os.environ.get("CP", "3"))
LOOK = int(os.environ.get("LOOK", "7"))
FBA = 192
QR = 32
SR = 128
PR = 224
VM = 10
VL = 13
VX = 16
VT = 19
def xreg(rt, ks):
    return 32 + 56 * rt + 4 * ks

TILES = [("W", m) for m in range(14)]
TILES += [("K", 0), ("K", 1)]
for c in range(8):
    if c < 7:
        TILES += [("K", 2 * c + 2), ("K", 2 * c + 3)]
    TILES += [("V", 2 * c), ("V", 2 * c + 1)]
NT = len(TILES)
assert NT == 46

def softmax_fillers(c, rare_blocks):
    F = []
    sb = SR + 48 * (c & 1)
    for rt in range(3):
        S = [sb + 16 * rt + i for i in range(16)]
        t = VT + 3 * rt
        x = VX + rt
        F += [f"v_max3_f32 v{t}, v{S[0]}, v{S[1]}, v{S[2]}",
              f"v_max3_f32 v{t+1}, v{S[3]}, v{S[4]}, v{S[5]}",
              f"v_max3_f32 v{t+2}, v{S[6]}, v{S[7]}, v{S[8]}",
              f"v_max3_f32 v{t}, v{t}, v{S[9]}, v{S[10]}",
              f"v_max3_f32 v{t+1}, v{t+1}, v{S[11]}, v{S[12]}",
              f"v_max3_f32 v{t+2}, v{t+2}, v{S[13]}, v{S[14]}",
              f"v_max3_f32 v{t}, v{t}, v{t+1}, v{S[15]}",
              f"v_max_f32 v{x}, v{t}, v{t+2}",
              f"v_mov_b32 v{t}, v{x}",
              "s_nop 1",
              f"v_permlane32_swap_b32 v{x}, v{t}",
              f"v_max_f32 v{x}, v{x}, v{t}",
              f"v_mov_b32 v{t}, v{x}",
              "s_nop 1",
              f"v_permlane16_swap_b32 v{x}, v{t}",
              f"v_max_f32 v{x}, v{x}, v{t}",
              f"v_mul_f32 v{x}, s51, v{x}"]
    if c == 0:
        for rt in range(3):
            F += [f"v_mov_b32 v{VM+rt}, v{VX+rt}"]
    else:
        lr = f"Lrare_{c}"
        F += [f"v_sub_f32 v{VT}, v{VX}, v{VM}",
              f"v_sub_f32 v{VT+1}, v{VX+1}, v{VM+1}",
              f"v_sub_f32 v{VT+2}, v{VX+2}, v{VM+2}",
              f"v_max3_f32 v{VT}, v{VT}, v{VT+1}, v{VT+2}",
              f"v_cmp_lt_f32 vcc, s52, v{VT}",
              f"s_cbranch_vccnz {lr}\n{lr}_ret:"]
        rare_blocks.append(lr)
    for rt in range(3):
        S = [sb + 16 * rt + i for i in range(16)]
        for i in range(16):
            F.append(f"v_fma_f32 v{S[i]}, v{S[i]}, s51, -v{VM+rt}")
        for i in range(16):
            F.append(f"v_exp_f32 v{S[i]}, v{S[i]}")
    for rt in range(3):
        S = [sb + 16 * rt + i for i in range(16)]
        t = VT + 3 * rt
        F += [f"v_add_f32 v{t}, v{S[0]}, v{S[1]}",
              f"v_add_f32 v{t+1}, v{S[2]}, v{S[3]}"]
        for i in range(4, 16, 2):
            F += [f"v_add_f32 v{t}, v{t}, v{S[i]}",
                  f"v_add_f32 v{t+1}, v{t+1}, v{S[i+1]}"]
        F += [f"v_add_f32 v{t}, v{t}, v{t+1}"]
        if c == 0:
            F += [f"v_mov_b32 v{VL+rt}, v{t}"]
        else:
            F += [f"v_add_f32 v{VL+rt}, v{VL+rt}, v{t}"]
    for rt in range(3):
        S = [sb + 16 * rt + i for i in range(16)]
        for j in range(2):
            for q in range(4):
                F.append(f"v_cvt_pk_bf16_f32 v{PR + 8*rt + 4*j + q}, v{S[8*j + 2*q]}, v{S[8*j + 2*q + 1]}")
    return F

def rare_block(lr):
    e(f"{lr}:")
    for rt in range(3):
        t = VT + 3 * rt
        e(f"  v_max_f32 v{t}, v{VM+rt}, v{VX+rt}")
        e(f"  v_sub_f32 v{t+1}, v{VM+rt}, v{t}")
        e(f"  v_exp_f32 v{t+1}, v{t+1}")
        e(f"  v_mov_b32 v{VM+rt}, v{t}")
        e(f"  v_mul_f32 v{VL+rt}, v{VL+rt}, v{t+1}")
        for i in range(64):
            a = 64 * rt + i
            e(f"  v_accvgpr_read_b32 v{t+2}, a{a}")
            e(f"  v_mul_f32 v{t+2}, v{t+2}, v{t+1}")
            e(f"  v_accvgpr_write_b32 a{a}, v{t+2}")
    e("  s_nop 1")
    e(f"  s_branch {lr}_ret")

XB = 32768
WW = 20971520
XS = 904
def xpieces():
    e("  v_lshlrev_b32 v28, 4, v1")
    e(f"  s_mul_i32 s5, s3, {XS}")
    e("  s_mul_i32 s6, s3, 896")
    e("  s_mov_b32 exec_lo, -1")
    e("  s_mov_b32 exec_hi, 0x00ffffff")
    for p in range(36):
        e(f"  s_add_u32 m0, s5, {XB + 4 * XS * p}")
        e(f"  s_add_u32 s53, s6, {4 * 896 * p}")
        e(f"  buffer_load_dwordx4 v28, s[8:11], s53 offen{' nt' if 'xnt' in MODE else ''} lds")
    e("  s_mov_b64 exec, -1")

def kernel1():
    e(f"attn_kernel:")
    e("  s_cmp_ge_u32 s2, 256")
    e("  s_cbranch_scc1 L_k1_end")
    if "stamp" in MODE:
        e("  s_memrealtime s[96:97]")
    e("  s_load_dwordx8 s[32:39], s[0:1], 0")
    e("  s_load_dwordx8 s[40:47], s[0:1], 40")
    e("  s_load_dwordx2 s[48:49], s[0:1], 96")
    e("  s_load_dwordx2 s[56:57], s[0:1], 32")
    e("  s_load_dwordx2 s[58:59], s[0:1], 72")
    e("  s_lshr_b32 s28, s2, 7")
    e("  s_lshr_b32 s29, s2, 4")
    e("  s_and_b32 s29, s29, 7")
    e("  s_and_b32 s30, s2, 15")
    e("  v_lshrrev_b32 v1, 6, v0")
    e("  s_nop 0")
    e("  v_readfirstlane_b32 s3, v1")
    e("  v_and_b32 v1, 63, v0")
    e("  s_waitcnt lgkmcnt(0)")
    e("  s_cmp_eq_u32 s28, 0")
    for i in range(8):
        e(f"  s_cselect_b32 s{32 + i}, s{32 + i}, s{40 + i}")
    e("  s_mul_i32 s4, s29, 129024")
    e("  s_add_u32 s8, s32, s4")
    e("  s_addc_u32 s9, s33, 0")
    e("  s_and_b32 s9, s9, 0xffff")
    e("  s_mov_b32 s10, 129024")
    e("  s_mov_b32 s11, 0x00020000")
    e("  s_lshl_b32 s4, s30, 9")
    e("  s_add_u32 s12, s38, s4")
    e("  s_addc_u32 s13, s39, 0")
    e("  s_and_b32 s13, s13, 0xffff")
    e(f"  s_sub_u32 s14, {448 * 8192}, s4")
    e("  s_mov_b32 s15, 0x00020000")
    e("  s_lshl_b32 s4, s29, 4")
    e("  s_add_u32 s4, s4, s30")
    e("  s_lshr_b32 s5, s4, 14")
    e("  s_lshl_b32 s4, s4, 18")
    e("  s_add_u32 s16, s34, s4")
    e("  s_addc_u32 s17, s35, s5")
    e("  s_and_b32 s17, s17, 0xffff")
    e("  s_mov_b32 s18, 262144")
    e("  s_mov_b32 s19, 0x00020000")
    e("  s_add_u32 s20, s36, s4")
    e("  s_addc_u32 s21, s37, s5")
    e("  s_and_b32 s21, s21, 0xffff")
    e("  s_mov_b32 s22, 262144")
    e("  s_mov_b32 s23, 0x00020000")
    e("  s_mov_b32 s24, s48")
    e("  s_and_b32 s25, s49, 0xffff")
    e(f"  s_mov_b32 s26, {2 * 1152 * 8192}")
    e("  s_mov_b32 s27, 0x00020000")
    e("  s_mov_b32 s51, 0x3db8aa3b")
    e("  s_mov_b32 s52, 0x41000000")
    e("  s_cmp_eq_u32 s3, 3")
    e("  s_cbranch_scc1 L_loader")
    e("  v_and_b32 v6, 15, v1")
    e("  v_lshrrev_b32 v7, 4, v1")
    e("  v_and_b32 v9, 7, v6")
    e("  v_lshlrev_b32 v9, 1, v9")
    e("  v_xor_b32 v9, v9, v7")
    e("  v_lshlrev_b32 v9, 4, v9")
    e("  v_lshl_add_u32 v2, v6, 9, v9")
    e("  v_lshrrev_b32 v8, 2, v1")
    e("  v_and_b32 v9, 7, v8")
    e("  v_lshlrev_b32 v9, 1, v9")
    e("  v_bfe_u32 v6, v1, 1, 1")
    e("  v_xor_b32 v6, v6, v9")
    e("  v_lshlrev_b32 v6, 4, v6")
    e("  v_lshl_add_u32 v3, v8, 9, v6")
    e("  v_and_b32 v6, 1, v1")
    e("  v_lshl_add_u32 v3, v6, 3, v3")
    e("  v_and_b32 v6, 3, v1")
    e("  v_xor_b32 v6, v6, v9")
    e("  v_lshlrev_b32 v6, 4, v6")
    e("  v_lshl_add_u32 v4, v8, 9, v6")

    e(f"  s_mul_i32 s6, s3, {CP}")
    e(f"  s_lshl_b32 s50, s6, 10")
    e("  s_lshl_b32 s6, s6, 1")
    e("  v_lshrrev_b32 v8, 5, v1")
    e("  v_add_u32 v8, s6, v8")
    e("  v_and_b32 v9, 31, v1")
    for i in range(CP):
        e(f"  v_add_u32 v6, {2 * i}, v8")
        e(f"  v_and_b32 v7, 7, v6")
        e(f"  v_lshlrev_b32 v7, 1, v7")
        e(f"  v_xor_b32 v7, v7, v9")
        e(f"  v_lshlrev_b32 v7, 4, v7")
        e(f"  v_lshl_add_u32 v{248 + i}, v6, 9, v7")
        e(f"  v_lshl_add_u32 v{248 + CP + i}, v6, 13, v7")
    def cpieces(n):
        kind, t = TILES[n]
        sbase = (n % NSLOT) * SLOT
        out = []
        if "nodma" in MODE and kind != "W" and n >= 20:
            return out
        for i in range(CP):
            if kind == "W":
                srd, so, v, nt = 12, 32 * t * 8192, 248 + CP + i, " nt"
            else:
                srd, so, v, nt = (16 if kind == "K" else 20), t * 16384, 248 + i, " nt"
            out += [f"s_add_u32 m0, s50, {sbase + 1024 * i}", f"s_mov_b32 s53, {so}",
                    f"buffer_load_dwordx4 v{v}, s[{srd}:{srd + 3}], s53 offen{nt} lds"]
        return out
    def pst(k):
        if "stamp" in MODE:
            e("  s_memrealtime s[60:61]")
            e("  s_waitcnt lgkmcnt(0)")
            e(f"  s_mov_b32 s{88 + k}, s60")
    pst(0)
    xpieces()
    for n in range(2):
        for x in cpieces(n):
            e("  " + x)
    pst(1)
    e(f"  s_waitcnt vmcnt({2 * CP})")
    e("  s_barrier")
    pst(2)
    e("  v_and_b32 v6, 15, v1")
    e("  v_lshrrev_b32 v7, 4, v1")
    e("  s_mul_i32 s5, s3, 48")
    e("  v_add_u32 v8, s5, v6")
    e(f"  v_mul_u32_u24 v8, {XS}, v8")
    e("  v_lshl_add_u32 v8, v7, 3, v8")
    e(f"  v_add_u32 v8, {XB}, v8")
    cnt = 0
    for rt in range(3):
        for ks in range(14):
            r = xreg(rt, ks)
            e(f"  ds_read_b64 v[{r}:{r + 1}], v8 offset:{rt * 16 * XS + 64 * ks}")
            e(f"  ds_read_b64 v[{r + 2}:{r + 3}], v8 offset:{rt * 16 * XS + 64 * ks + 32}")
            cnt += 2
            if cnt % 14 == 0:
                e("  s_waitcnt lgkmcnt(6)")
    e("  s_waitcnt lgkmcnt(0)")
    pst(3)
    e("  s_barrier")
    for n in range(2, PD):
        for x in cpieces(n):
            e("  " + x)
    frags = []
    atmp = [6, 7, 8, 9]
    ac = [0]
    def nexta():
        ac[0] += 1
        return atmp[ac[0] % 4]
    for n, (kind, t) in enumerate(TILES):
        sbase = (n % NSLOT) * SLOT
        for f in range(16):
            fr = dict(pre=[], reads=[], mf=[], post=[], phase=n)
            if f == 0:
                last = min(n + PD - 1, NT - 1)
                fr["pre"].append(f"s_waitcnt vmcnt({CP * (last - n)})")
                fr["pre"].append("s_barrier")
                if n + PD < NT:
                    fr["pre"] += cpieces(n + PD)
                a0 = {"W": 4, "K": 2, "V": 3}[kind]
                fr["pre"].append(f"v_add_u32 v5, {sbase}, v{a0}")
            if kind == "W":
                s, hb = f >> 1, f & 1
                if hb == 0:
                    a = nexta(); cur = a
                    fr["pre"].append(f"v_xor_b32 v{a}, {(s & 3) << 6}, v5")
                a = cur
                off = 256 * (s >> 2) + 8 * hb
                fr["reads"] = [f"ds_read_b64_tr_b16 a[{{fb}}:{{fb1}}], v{a} offset:{off}",
                               f"ds_read_b64_tr_b16 a[{{fb2}}:{{fb3}}], v{a} offset:{off + 8192}"]
                for rt in range(3):
                    d = 64 * rt + 4 * f
                    c = "0" if t == 0 else f"a[{d}:{d + 3}]"
                    b = xreg(rt, t)
                    fr["mf"].append(f"v_mfma_f32_16x16x32_bf16 a[{d}:{d + 3}], a[{{fb}}:{{fb3}}], v[{b}:{b + 3}], {c}")
            elif kind == "V":
                a = nexta()
                fr["pre"].append(f"v_xor_b32 v{a}, {(f & 7) << 5}, v5")
                off = 256 * (f >> 3)
                fr["reads"] = [f"ds_read_b64_tr_b16 a[{{fb}}:{{fb1}}], v{a} offset:{off}",
                               f"ds_read_b64_tr_b16 a[{{fb2}}:{{fb3}}], v{a} offset:{off + 8192}"]
                for rt in range(3):
                    d = 64 * rt + 4 * f
                    c = "0" if t == 0 else f"a[{d}:{d + 3}]"
                    b = PR + 8 * rt + 4 * (t & 1)
                    fr["mf"].append(f"v_mfma_f32_16x16x32_bf16 a[{d}:{d + 3}], a[{{fb}}:{{fb3}}], v[{b}:{b + 3}], {c}")
            else:
                s, tl = f >> 1, f & 1
                if tl == 0:
                    a = nexta(); cur = a
                    fr["pre"].append(f"v_xor_b32 v{a}, {(s & 3) << 6}, v5")
                a = cur
                off = 256 * (s >> 2) + 8192 * tl
                fr["reads"] = [f"ds_read_b128 a[{{fb}}:{{fb3}}], v{a} offset:{off}"]
                ch = t >> 1
                for rt in range(3):
                    d = SR + 48 * (ch & 1) + 16 * rt + 4 * (2 * (t & 1) + tl)
                    c = "0" if s == 0 else f"v[{d}:{d + 3}]"
                    q = QR + 32 * rt + 4 * s
                    fr["mf"].append(f"v_mfma_f32_16x16x32_bf16 v[{d}:{d + 3}], a[{{fb}}:{{fb3}}], v[{q}:{q + 3}], {c}")
            frags.append(fr)
    N = len(frags)
    post = ["s_nop 7", "s_nop 1"]
    for rt in range(3):
        for s in range(8):
            for q in range(4):
                a = 64 * rt + 8 * s + 2 * q
                post += [f"v_accvgpr_read_b32 v{VT}, a{a}", f"v_accvgpr_read_b32 v{VT+1}, a{a+1}",
                         f"v_cvt_pk_bf16_f32 v{QR + 32*rt + 4*s + q}, v{VT}, v{VT+1}"]
    post += ["s_nop 1"]
    frags[14 * 16 - 1]["post"] = post
    rare = []
    fillers = {}
    tidx = {tk: n for n, tk in enumerate(TILES)}
    for c in range(8):
        F = softmax_fillers(c, rare)
        if c < 7:
            p0 = tidx[("K", 2 * c + 2)]
            h = len(F) // 2
            fillers[p0] = F[:h]
            fillers[p0 + 1] = F[h:]
        else:
            frags[(tidx[("V", 13)] + 1) * 16 - 1]["post"] = ["s_nop 7"] + F + ["s_nop 1"]

    F14 = []
    for rt in range(3):
        l = VL + rt
        t = VT + 3 * rt
        F14 += [f"v_mov_b32 v{t}, v{l}", "s_nop 1", f"v_permlane32_swap_b32 v{l}, v{t}", f"v_add_f32 v{l}, v{l}, v{t}",
                f"v_mov_b32 v{t}, v{l}", "s_nop 1", f"v_permlane16_swap_b32 v{l}, v{t}", f"v_add_f32 v{l}, v{l}, v{t}",
                f"v_rcp_f32 v{l}, v{l}"]
    F14 += ["s_mul_i32 s4, s3, 25344", "s_add_u32 s4, s4, 98304", "s_cmp_eq_u32 s3, 2\n  s_cselect_b32 s4, 0, s4",
            "v_and_b32 v29, 15, v1", "v_mul_u32_u24 v29, 528, v29", "v_lshrrev_b32 v30, 4, v1",
            "v_lshl_add_u32 v29, v30, 3, v29", "v_add_u32 v29, s4, v29"]
    fillers[tidx[("V", 14)]] = F14
    def conv(t):
        out = []
        for rt in range(3):
            a = 64 * rt + 4 * t
            tb = 128 + 8 * ((3 * t + rt) % 8)
            for r in range(4):
                out.append(f"v_accvgpr_read_b32 v{tb + r}, a{a + r}")
            for r in range(4):
                out.append(f"v_mul_f32 v{tb + r}, v{VL + rt}, v{tb + r}")
            out.append(f"v_cvt_pk_bf16_f32 v{tb + 4}, v{tb}, v{tb + 1}")
            out.append(f"v_cvt_pk_bf16_f32 v{tb + 5}, v{tb + 2}, v{tb + 3}")
            out.append(f"ds_write_b64 v29, v[{tb + 4}:{tb + 5}] offset:{rt * 16 * 528 + 32 * t}")
        return out
    for t in range(13):
        frags[45 * 16 + t + 3]["post"] = conv(t)
    tailconv = ["s_nop 7"] + conv(13) + conv(14) + conv(15)
    def fmt(s, i):
        fb = FBA + 4 * (i % 8)
        return s.format(fb=fb, fb1=fb + 1, fb2=fb + 2, fb3=fb + 3)
    stamps = []
    def stamp():
        if "stamp" not in MODE:
            return
        k = len(stamps)
        stamps.append(k)
        e("  s_memtime s[60:61]")
        e("  s_waitcnt lgkmcnt(0)")
        e(f"  s_mov_b32 s{64 + k}, s60")
        if k == 0:
            e("  s_memrealtime s[60:61]")
            e("  s_waitcnt lgkmcnt(0)")
            e(f"  s_mov_b32 s98, s60")
    def issue_reads(i):
        if i % 32 == 0 or i == 14 * 16:
            stamp()
        for x in frags[i]["pre"]:
            e("  " + x)
        for x in frags[i]["reads"]:
            e("  " + fmt(x, i))
    stamp()

    for i in range(LOOK):
        issue_reads(i)
    for i in range(N):
        out = sum(len(frags[k]["reads"]) for k in range(i + 1, min(i + LOOK, N)))
        e(f"  s_waitcnt lgkmcnt({out})")
        ph = frags[i]["phase"]
        F = fillers.get(ph, [])
        fi = i % 16
        side = []
        if i + LOOK < N:
            j = i + LOOK
            if "stamp" in MODE and (j % 64 == 32 or j == 14 * 16):
                side.append("@stamp")
            side += list(frags[j]["pre"]) + [fmt(x, j) for x in frags[j]["reads"]]
        ns = len(side)
        for mi, m in enumerate(frags[i]["mf"]):
            if "nocompute" not in MODE:
                e("  " + fmt(m, i))
            for x in side[mi * ns // 3:(mi + 1) * ns // 3]:
                if x == "@stamp":
                    stamp()
                else:
                    e("  " + x)
            k = fi * 3 + mi
            if F and k >= 3:
                lo = (k - 3) * len(F) // 45
                hi = (k - 2) * len(F) // 45
                for x in F[lo:hi]:
                    e("  " + x)
        for x in frags[i]["post"]:
            e("  " + x)
    stamp()
    for x in tailconv:
        e("  " + x)
    e("  v_lshrrev_b32 v8, 5, v1")
    e("  v_and_b32 v7, 31, v1")
    e("  v_mul_u32_u24 v9, 528, v8")
    e("  v_lshl_add_u32 v9, v7, 4, v9")
    e("  v_add_u32 v9, s4, v9")
    e("  s_lshl_b32 s4, s28, 4")
    e("  s_add_u32 s4, s4, s30")
    e("  s_mul_i32 s4, s4, 1152")
    e("  s_mul_i32 s5, s29, 144")
    e("  s_add_u32 s4, s4, s5")
    e("  s_mul_i32 s5, s3, 48")
    e("  s_add_u32 s4, s4, s5")
    e("  s_lshl_b32 s4, s4, 9")
    e("  v_lshlrev_b32 v8, 9, v8")
    e("  v_lshl_add_u32 v8, v7, 4, v8")
    e("  s_waitcnt lgkmcnt(0)")
    stamp()
    for hh in range(2):
        for i in range(12 * hh, 12 * hh + 12):
            e(f"  ds_read_b128 v[{32 + 4 * i}:{35 + 4 * i}], v9 offset:{2 * i * 528}")
        for i in range(12 * hh, 12 * hh + 12):
            e(f"  s_waitcnt lgkmcnt({12 * hh + 11 - i})")
            e(f"  s_add_u32 s5, s4, {1024 * i}")
            e(f"  buffer_store_dwordx4 v[{32 + 4 * i}:{35 + 4 * i}], v8, s[24:27], s5 offen{' nt' if 'ostnt' in MODE else ''}")
    if "stamp" in MODE:
        stamp()
        e("  s_memrealtime s[60:61]")
        e("  s_waitcnt lgkmcnt(0)")
        assert len(stamps) <= 24
        e("  s_mov_b32 s93, s96")
        e("  s_mov_b32 s94, s98")
        e("  s_mov_b32 s95, s60")
        stamps += [24, 25, 26, 27, 29, 30, 31]
        e("  s_lshl_b32 s4, s2, 2")
        e("  s_add_u32 s4, s4, s3")
        e("  s_lshl_b32 s4, s4, 8")
        e(f"  s_add_u32 s4, s4, {2 * 1152 * 8192}")
        e(f"  s_mov_b32 s26, {2 * 1152 * 8192 + 1024 * 256}")
        for k in stamps:
            e(f"  v_mov_b32 v20, s{64 + k}")
            e(f"  v_mov_b32 v21, 0")
            e(f"  buffer_store_dword v20, v21, s[24:27], s4 offen offset:{4 * k}")
    e("  s_endpgm")
    for lr in rare:
        rare_block(lr)
    e("L_loader:")
    e("  v_lshrrev_b32 v10, 5, v1")
    e("  v_and_b32 v11, 31, v1")
    for j in range(4):
        e(f"  v_add_u32 v12, {2 * j}, v10")
        e(f"  v_lshlrev_b32 v13, 1, v12")
        if "noswz" in MODE:
            e(f"  v_mov_b32 v13, v11")
        else:
            e(f"  v_xor_b32 v13, v13, v11")
        e(f"  v_lshlrev_b32 v13, 4, v13")
        e(f"  v_lshl_add_u32 v{2 + j}, v12, 9, v13")
        e(f"  v_lshl_add_u32 v{6 + j}, v12, 13, v13")
    def issue(n):
        kind, t = TILES[n]
        sbase = (n % NSLOT) * SLOT
        if "nodma" in MODE and kind != "W" and n >= 20:
            return
        for j in range(3 * CP, 16):
            if kind == "W":
                srd, so, v = 12, (32 * t + 8 * (j >> 2)) * 8192, 6 + (j & 3)
            else:
                srd, so, v = (16 if kind == "K" else 20), t * 16384 + (j >> 2) * 4096, 2 + (j & 3)
            e(f"  s_mov_b32 m0, {sbase + 1024 * j}")
            e(f"  s_mov_b32 s53, {so}")
            nt = " nt"
            e(f"  buffer_load_dwordx4 v{v}, s[{srd}:{srd + 3}], s53 offen{nt} lds")
    xpieces()
    for n in range(2):
        issue(n)
    e(f"  s_waitcnt vmcnt({2 * (16 - 3 * CP)})")
    e("  s_barrier")
    e("  s_barrier")
    for n in range(2, PD):
        issue(n)
    e("  v_lshlrev_b32 v15, 7, v1")
    for n in range(14 + PD, min(14 + PD + PFN, NT)):
        kind, t = TILES[n]
        srd = 16 if kind == "K" else 20
        for hf in range(2):
            e(f"  s_mov_b32 s53, {t * 16384 + 8192 * hf}")
            e(f"  buffer_load_dword v150, v15, s[{srd}:{srd + 3}], s53 offen{PFNT}")
    e("  s_cmp_eq_u32 s28, 0")
    e("  s_cselect_b32 s56, s56, s58")
    e("  s_cselect_b32 s57, s57, s59")
    e("  s_mov_b32 s60, s56")
    e("  s_and_b32 s61, s57, 0xffff")
    e(f"  s_mov_b32 s62, {4096 * 896}")
    e("  s_mov_b32 s63, 0x00020000")
    e(f"  s_mov_b32 s26, {WW + 2 * 7 * 4096 * 128}")
    e("  s_lshl_b32 s4, s30, 8")
    e("  s_lshl_b32 s5, s29, 5")
    e("  s_add_u32 s4, s4, s5")
    e("  s_mul_i32 s54, s4, 896")
    e("  s_mul_i32 s55, s28, 7 * 4096")
    e("  s_add_u32 s55, s55, s4")
    e("  s_lshl_b32 s55, s55, 7")
    e(f"  s_add_u32 s55, s55, {WW}")
    e("  v_lshlrev_b32 v12, 4, v1")
    e("  v_lshrrev_b32 v13, 3, v1")
    e("  v_lshlrev_b32 v13, 19, v13")
    e("  v_and_b32 v14, 7, v1")
    e("  v_lshl_add_u32 v13, v14, 4, v13")
    for n in range(NT):
        last = min(n + PD - 1, NT - 1)
        e(f"  s_waitcnt vmcnt({min((16 - 3 * CP) * (last - n), 56)})")
        e("  s_barrier")
        if n + PD < NT:
            issue(n + PD)
        if n == 14:
            e("  s_mov_b32 exec_lo, -1")
            e("  s_mov_b32 exec_hi, 0x00ffffff")
            for r in range(32):
                e(f"  s_add_u32 s53, s54, {r * 896}")
                e(f"  buffer_load_dwordx4 v[{16 + 4 * r}:{19 + 4 * r}], v12, s[60:63], s53 offen nt")
            e("  s_mov_b64 exec, -1")
        if n == 24:
            e("  s_mov_b32 exec_lo, -1")
            e("  s_mov_b32 exec_hi, 0x00ffffff")
            for r in range(32):
                e(f"  s_add_u32 s53, s55, {r * 128}")
                e(f"  buffer_store_dwordx4 v[{16 + 4 * r}:{19 + 4 * r}], v13, s[24:27], s53 offen")
            e("  s_mov_b64 exec, -1")
    e("L_k1_end:")
    e("  s_endpgm")

def kernel2():
    NS2 = 5; SL2 = 32768; PD2 = 4; NSUB = 32
    ACC2 = 64
    AF = 16
    BFr = 32
    e(".p2align 8")
    e("oproj_kernel:")
    e("  s_cmp_ge_u32 s2, 252")
    e("  s_cbranch_scc1 L_k2_end")
    if "k2stamp" in MODE:
        e("  s_memrealtime s[96:97]")
    e("  s_load_dwordx2 s[32:33], s[0:1], 32")
    e("  s_load_dwordx2 s[34:35], s[0:1], 72")
    e("  s_load_dwordx2 s[36:37], s[0:1], 80")
    e("  s_load_dwordx2 s[38:39], s[0:1], 96")
    e("  s_and_b32 s4, s2, 7")
    e("  s_lshr_b32 s5, s2, 3")
    e("  s_lshl_b32 s6, s4, 5")
    e("  s_mul_i32 s7, s4, 31")
    e("  s_add_u32 s7, s7, 4")
    e("  s_cmp_lt_u32 s4, 4")
    e("  s_cselect_b32 s6, s6, s7")
    e("  s_add_u32 s6, s6, s5")
    e("  s_cmp_ge_u32 s6, 126")
    e("  s_cselect_b32 s28, 1, 0")
    e("  s_mul_i32 s4, s28, 126")
    e("  s_sub_u32 s4, s6, s4")
    e("  s_mul_i32 s29, s4, 9363")
    e("  s_lshr_b32 s29, s29, 16")
    e("  s_mul_i32 s5, s29, 7")
    e("  s_sub_u32 s30, s4, s5")
    e("  v_lshrrev_b32 v1, 6, v0")
    e("  s_nop 0")
    e("  v_readfirstlane_b32 s3, v1")
    e("  v_and_b32 v1, 63, v0")
    e("  s_waitcnt lgkmcnt(0)")
    e("  s_cmp_eq_u32 s28, 0")
    e("  s_cselect_b32 s32, s32, s34")
    e("  s_cselect_b32 s33, s33, s35")
    e("  s_mov_b32 s12, s38")
    e("  s_and_b32 s13, s39, 0xffff")
    e(f"  s_mov_b32 s14, {WW + 2 * 7 * 4096 * 128}")
    e("  s_mov_b32 s15, 0x00020000")
    e("  s_mov_b32 s16, s36")
    e("  s_and_b32 s17, s37, 0xffff")
    e(f"  s_mov_b32 s18, {1152 * 1792}")
    e("  s_mov_b32 s19, 0x00020000")
    e("  s_lshl_b32 s50, s3, 11")
    e("  s_and_b32 s40, s3, 3")
    e("  s_lshr_b32 s41, s3, 2")
    e("  v_and_b32 v9, 15, v1")
    e("  v_lshrrev_b32 v10, 4, v1")
    e("  v_lshrrev_b32 v11, 3, v1")
    e("  v_bfe_u32 v12, v11, 1, 1")
    e("  v_lshlrev_b32 v12, 1, v12")
    e("  v_and_b32 v13, 7, v1")
    e("  v_xor_b32 v12, v12, v13")
    e("  v_lshlrev_b32 v12, 4, v12")
    e("  s_lshl_b32 s5, s3, 4")
    e("  v_add_u32 v11, s5, v11")
    e("  v_lshlrev_b32 v11, 7, v11")
    e("  v_add_u32 v2, v11, v12")
    e("  s_mul_i32 s5, s28, 7")
    e("  s_add_u32 s5, s5, s30")
    e("  s_lshl_b32 s5, s5, 19")
    e(f"  s_add_u32 s5, s5, {WW}")
    e("  v_add_u32 v2, s5, v2")
    e("  v_xor_b32 v3, 64, v2")
    e(f"  v_add_u32 v3, {8 * 128}, v3")
    e("  v_lshlrev_b32 v12, 1, v10")
    e("  v_xor_b32 v12, v12, v9")
    e("  v_lshlrev_b32 v12, 4, v12")
    e("  s_lshl_b32 s4, s28, 4")
    e("  s_mul_i32 s4, s4, 1152")
    e("  s_lshl_b32 s5, s29, 6")
    e("  s_add_u32 s4, s4, s5")
    e("  s_lshl_b32 s5, s3, 3")
    e("  s_add_u32 s4, s4, s5")
    e("  v_add_u32 v11, s4, v10")
    e("  v_lshlrev_b32 v11, 9, v11")
    e("  v_add_u32 v4, v11, v12")
    e("  v_xor_b32 v5, 128, v4")
    e(f"  v_add_u32 v5, {4 * 512}, v5")
    e("  v_bfe_u32 v11, v1, 2, 2")
    e("  v_lshl_add_u32 v11, v10, 3, v11")
    e("  s_lshl_b32 s5, s40, 5")
    e("  v_add_u32 v11, s5, v11")
    e("  v_bfe_u32 v12, v1, 3, 1")
    e("  v_bfe_u32 v13, v1, 4, 1")
    e("  v_lshl_add_u32 v12, v13, 1, v12")
    e("  v_lshlrev_b32 v12, 1, v12")
    e("  v_bfe_u32 v13, v1, 1, 1")
    e("  v_or_b32 v12, v12, v13")
    e("  v_lshlrev_b32 v12, 4, v12")
    e("  v_lshl_add_u32 v6, v11, 7, v12")
    e("  v_and_b32 v13, 1, v1")
    e("  v_lshl_add_u32 v6, v13, 3, v6")
    e("  s_lshl_b32 s5, s40, 2")
    e("  v_add_u32 v12, s5, v10")
    e("  v_and_b32 v13, 7, v9")
    e("  v_lshlrev_b32 v13, 1, v13")
    e("  v_xor_b32 v12, v12, v13")
    e("  v_lshlrev_b32 v12, 4, v12")
    e("  s_lshl_b32 s5, s41, 5")
    e("  v_add_u32 v11, s5, v9")
    e("  v_lshl_add_u32 v7, v11, 8, v12")
    e("  v_add_u32 v7, 16384, v7")

    def loads(sb):
        sl = (sb % NS2) * SL2
        for j in range(2):
            e(f"  s_add_u32 m0, s50, {sl + 1024 * j}")
            e(f"  s_mov_b32 s53, {0 if 'k2now' in MODE else 128 * sb * 128}")
            e(f"  buffer_load_dwordx4 v{2 + j}, s[12:15], s53 offen{' nt' if 'k2ntw' in MODE else ''} lds")
        for j in range(2):
            e(f"  s_add_u32 m0, s50, {sl + 16384 + 1024 * j}")
            e(f"  s_mov_b32 s53, {0 if 'k2noo' in MODE else (sb >> 1) * 1152 * 512 + (sb & 1) * 256}")
            e(f"  buffer_load_dwordx4 v{4 + j}, s[12:15], s53 offen{' nt' if 'k2nto' in MODE else ''} lds")
    st2 = []
    def stamp2():
        if "k2stamp" not in MODE:
            return
        k = len(st2); st2.append(k)
        e("  s_memrealtime s[60:61]")
        e("  s_waitcnt lgkmcnt(0)")
        e(f"  s_mov_b32 s{64 + k}, s60")
    stamp2()
    for sb in range(PD2):
        loads(sb)
    for sb in range(NSUB):
        sl = (sb % NS2) * SL2
        last = min(sb + PD2 - 1, NSUB - 1)
        e(f"  s_waitcnt vmcnt({4 * (last - sb)})")
        e("  s_barrier")
        if sb % 2 == 0:
            stamp2()
        e(f"  v_add_u32 v8, {sl}, v6")
        e(f"  v_add_u32 v11, {sl}, v7")
        for mi in range(2):
            e(f"  ds_read_b128 v[{BFr + 4 * mi}:{BFr + 4 * mi + 3}], v11 offset:{16 * mi * 256}")
        for ni in range(4):
            e(f"  v_xor_b32 v{12 + ni}, {ni << 5}, v8")
            e(f"  ds_read_b64_tr_b16 v[{AF + 4 * ni}:{AF + 4 * ni + 1}], v{12 + ni}")
            e(f"  ds_read_b64_tr_b16 v[{AF + 4 * ni + 2}:{AF + 4 * ni + 3}], v{12 + ni} offset:512")
        if sb + PD2 < NSUB:
            loads(sb + PD2)
        for ni in range(4):
            e(f"  s_waitcnt lgkmcnt({2 * (3 - ni)})")
            for mi in range(2):
                d = ACC2 + 4 * (2 * ni + mi)
                c = "0" if sb == 0 else f"v[{d}:{d + 3}]"
                b = BFr + 4 * mi
                e(f"  v_mfma_f32_16x16x32_bf16 v[{d}:{d + 3}], v[{AF + 4 * ni}:{AF + 4 * ni + 3}], v[{b}:{b + 3}], {c}")
    e("  s_nop 7")
    e("  s_nop 1")
    e("  s_barrier")
    e("  v_lshlrev_b32 v5, 4, v1")
    e("  s_lshl_b32 s4, s3, 13")
    e("  v_add_u32 v5, s4, v5")
    for t in range(8):
        d = ACC2 + 4 * t
        e(f"  ds_write_b128 v5, v[{d}:{d + 3}] offset:{1024 * t}")
    e("  s_waitcnt lgkmcnt(0)")
    e("  s_barrier")
    e("  v_lshlrev_b32 v5, 4, v1")
    e("  s_lshl_b32 s4, s41, 15")
    e("  s_lshl_b32 s5, s40, 11")
    e("  s_add_u32 s4, s4, s5")
    e("  v_add_u32 v5, s4, v5")
    for tt in range(2):
        for p in range(4):
            r = 16 + 4 * p + 16 * tt
            e(f"  ds_read_b128 v[{r}:{r + 3}], v5 offset:{8192 * p + 1024 * tt}")
    e("  s_waitcnt lgkmcnt(0)")
    for tt in range(2):
        b0 = 16 + 16 * tt
        for p in range(1, 4):
            for r in range(4):
                e(f"  v_add_f32 v{b0 + r}, v{b0 + r}, v{b0 + 4 * p + r}")
    e("  s_lshl_b32 s4, s41, 5")
    e("  s_lshl_b32 s5, s29, 6")
    e("  s_add_u32 s4, s4, s5")
    e("  v_add_u32 v9, s4, v9")
    e("  v_mul_u32_u24 v9, 1792, v9")
    e("  v_lshl_add_u32 v9, v10, 3, v9")
    e("  s_mul_i32 s4, s28, 896")
    e("  s_lshl_b32 s5, s30, 7")
    e("  s_add_u32 s4, s4, s5")
    e("  s_lshl_b32 s5, s40, 5")
    e("  s_add_u32 s4, s4, s5")
    e("  v_add_u32 v9, s4, v9")
    for tt in range(2):
        b0 = 16 + 16 * tt
        e(f"  v_cvt_pk_bf16_f32 v{b0}, v{b0}, v{b0 + 1}")
        e(f"  v_cvt_pk_bf16_f32 v{b0 + 1}, v{b0 + 2}, v{b0 + 3}")
        e(f"  s_mov_b32 s53, {tt * 16 * 1792}")
        e(f"  buffer_store_dwordx2 v[{b0}:{b0 + 1}], v9, s[16:19], s53 offen")
    if "k2stamp" in MODE:
        stamp2()
        e(f"  s_mov_b32 s{64 + len(st2)}, s96")
        st2.append(len(st2))
        e("  s_lshl_b32 s4, s2, 3")
        e("  s_add_u32 s4, s4, s3")
        e("  s_lshl_b32 s4, s4, 7")
        e(f"  s_add_u32 s4, s4, {2 * 1152 * 8192}")
        e(f"  s_mov_b32 s14, {2 * 1152 * 8192 + 2048 * 128}")
        for k in st2:
            e(f"  v_mov_b32 v20, s{64 + k}")
            e(f"  v_mov_b32 v21, 0")
            e(f"  buffer_store_dword v20, v21, s[12:15], s4 offen offset:{4 * k}")
    e("L_k2_end:")
    e("  s_endpgm")

def main():
    hdr = open(f"cdna_kernels/{NAME}.s.ref").read().splitlines()
    for line in hdr:
        if line.startswith("; @launch"):
            break
        if "@launch" in line:
            continue
        e(line)
    e(f"; @launch kernel=attn_kernel grid=(256,1,1) block=(256,1,1) lds={NSLOT * SLOT}")
    e("; @launch kernel=oproj_kernel grid=(252,1,1) block=(512,1,1) lds=163840")
    e('.amdgcn_target "amdgcn-amd-amdhsa--gfx950"')
    e(".text")
    e(".globl attn_kernel")
    e(".p2align 8")
    e(".type attn_kernel,@function")
    kernel1()
    e(".globl oproj_kernel")
    e(".type oproj_kernel,@function")
    kernel2()
    e('.section .rodata,"a"')
    for name, nv, ao in (("attn_kernel", 480, 256), ("oproj_kernel", 96, 96)):
        e(".p2align 6")
        e(f".amdhsa_kernel {name}")
        e(f"  .amdhsa_next_free_vgpr {nv}")
        e("  .amdhsa_next_free_sgpr 100")
        e(f"  .amdhsa_accum_offset {ao}")
        e("  .amdhsa_group_segment_fixed_size 0")
        e("  .amdhsa_kernarg_size 104")
        e("  .amdhsa_user_sgpr_count 2")
        e("  .amdhsa_user_sgpr_kernarg_segment_ptr 1")
        e("  .amdhsa_system_sgpr_workgroup_id_x 1")
        e(".end_amdhsa_kernel")
    open(OUT, "w").write("\n".join(x for x in L if x is not None) + "\n")

main()
```
